```python
import torch

def _softmax(x, axis=-1):
    return torch.softmax(x, dim=axis)
def _gelu(x):
    return torch.nn.functional.gelu(x, approximate="tanh")
def _silu(x):
    return torch.nn.functional.silu(x)
def _sigmoid(x):
    return torch.sigmoid(x)
def _layernorm(x, axis=-1, eps=1e-5):
    m = x.mean(dim=axis, keepdim=True)
    v = x.var(dim=axis, keepdim=True, unbiased=False)
    return (x - m) / torch.sqrt(v + eps)
def _scatter_add(tgt, idx, src, axis=0):
    return tgt.clone().index_add_(axis, idx, src)
def _segment_sum(src, seg, n):
    out = torch.zeros((n,) + src.shape[1:], dtype=src.dtype)
    return out.index_add_(0, seg, src)
def _pad(x, pw):
    flat = tuple(v for pair in reversed(pw) for v in pair)
    return torch.nn.functional.pad(x, flat)

kernel_name = 'sequential_preLN__gqa_block_cached__dense_activation_gelu__decode'

def setup_inputs():

    _w = (lambda a: (lambda t: t.to(torch.bfloat16) if t.is_floating_point() else t)(torch.as_tensor(a)))
    def _A_setup():
        B, Sq, D = 2, 1, 576
        Hq, Hkv, Sk, Dh = 32, 16, 32768, 128
        assert Hq % Hkv == 0, (Hq, Hkv)
        return {
            "x": _w((lambda *s: torch.randn(*s, dtype=torch.bfloat16) * 0.1)(B, Sq, D)),
            "k_cache": _w((lambda *s: torch.randn(*s, dtype=torch.bfloat16) * 1.6)(B, Hkv, Sk, Dh)),
            "v_cache": _w((lambda *s: torch.randn(*s, dtype=torch.bfloat16) * 1.6)(B, Hkv, Sk, Dh)),
            "wq": _w((lambda *s: torch.randn(*s, dtype=torch.bfloat16) * 1.6)(D, Hq * Dh) * (D ** -0.5)),
            "wo": _w((lambda *s: torch.randn(*s, dtype=torch.bfloat16) * 1.6)(Hq * Dh, D) * ((Hq * Dh) ** -0.5)),
        }
    _A_in = _A_setup()

    def _B_setup():
        B, S, D, F = 2, 1, 576, 4608
        return {
            "x": _w((lambda *s: torch.randn(*s, dtype=torch.bfloat16) * 0.1)(B, S, D)),
            "w1": _w((lambda *s: torch.randn(*s, dtype=torch.bfloat16) * 3.2)(D, F) * (D ** -0.5)),
            "b1": _w((lambda *s: torch.randn(*s, dtype=torch.bfloat16) * 3.2)(F) * 0.01),
            "w2": _w((lambda *s: torch.randn(*s, dtype=torch.bfloat16) * 3.2)(F, D) * (F ** -0.5)),
            "b2": _w((lambda *s: torch.randn(*s, dtype=torch.bfloat16) * 3.2)(D) * 0.01),
        }
    _B_in = _B_setup()

    return {
        "A_x": _A_in["x"],
        "A_k_cache": _A_in["k_cache"],
        "A_v_cache": _A_in["v_cache"],
        "A_wq": _A_in["wq"],
        "A_wo": _A_in["wo"],
        "B_x": _B_in["x"],
        "B_w1": _B_in["w1"],
        "B_b1": _B_in["b1"],
        "B_w2": _B_in["w2"],
        "B_b2": _B_in["b2"],
    }

def reference(A_x, A_k_cache, A_v_cache, A_wq, A_wo, B_x, B_w1, B_b1, B_w2, B_b2):
    def _A_ref(x, k_cache, v_cache, wq, wo):
        B, Sq, D = x.shape
        Hq, Dh = 32, 128
        Hkv = k_cache.shape[1]
        rep = Hq // Hkv
        q = (lambda x, *d: x.permute(*d))((x @ wq).reshape(B, Sq, Hq, Dh), 0, 2, 1, 3)
        k = (lambda x, n, axis: torch.repeat_interleave(x, n, dim=axis))(k_cache, rep, axis=1)
        v = (lambda x, n, axis: torch.repeat_interleave(x, n, dim=axis))(v_cache, rep, axis=1)
        scores = torch.einsum("bhqd,bhkd->bhqk", q, k) * (Dh ** -0.5)
        p = _softmax(scores, axis=-1)
        o = torch.einsum("bhqk,bhkd->bhqd", p, v)
        return (lambda x, *d: x.permute(*d))(o, 0, 2, 1, 3).reshape(B, Sq, Hq * Dh) @ wo

    def _B_ref(x, w1, b1, w2, b2):
        h = torch.einsum("bsd,df->bsf", x, w1) + b1
        h = _gelu(h)
        return torch.einsum("bsf,fd->bsd", h, w2) + b2

    x = A_x
    h = x + _A_ref(_layernorm(x, axis=-1), A_k_cache, A_v_cache, A_wq, A_wo)
    h2 = h + _B_ref(_layernorm(h, axis=-1), B_w1, B_b1, B_w2, B_b2)
    return h2
```

```python
import sys
NAME = "sequential_preLN__gqa_block_cached__dense_activation_gelu__decode"
HDR = open("cdna_kernels/" + NAME + ".s.ref").read().split("; Override launch")[0]
WS_Q, WS_ML, WS_A, WS_H, WS_P = 0x1000, 0x10000, 0x20000, 0x80000, 0x100000
XN, QP, QL, OA, MLW, OB, HB, W1P, GL, STG = 0, 10240, 10752, 11264, 15360, 15488, 17664, 19968, 20480, 21504
LDS = STG + 4 * 16384
DPP = " row_mask:0xf bank_mask:0xf"
M8 = "s_mov_b32 exec_lo, 0x00030003\ns_mov_b32 exec_hi, 0x00030003"

def gen(NS=3, stamps=False, twolevel=False, b0=True, prio=0):
    L = []; A = L.append
    uid = [0]
    def lab(p):
        uid[0] += 1; return f"L_{p}{uid[0]}"
    def stamp(i):
        if stamps: A(f"s_memrealtime s[{80+2*i}:{81+2*i}]")
    def fin():
        if stamps:
            stamp(1); A("s_mov_b64 exec, -1\ns_waitcnt lgkmcnt(0)")
            for i in range(8): A(f"v_mov_b32 v{8+i}, s{80+2*i}")
            A("s_lshl_b32 s3, s2, 3\ns_add_u32 s3, s3, s60\ns_lshl_b32 s3, s3, 6\ns_add_u32 s3, s3, 0x800000\nv_mov_b32 v1, 0")
            A("buffer_store_dwordx4 v[8:11], v1, s[12:15], s3 offen\nbuffer_store_dwordx4 v[12:15], v1, s[12:15], s3 offen offset:16")
        A("s_endpgm")
    def srd(d, p, size):
        A(f"s_mov_b32 s{d}, s{p}\ns_mov_b32 s{d+1}, s{p+1}\ns_mov_b32 s{d+2}, {size}\ns_mov_b32 s{d+3}, 0x20000")
    def swapred(op, v, t, which):
        A(f"v_mov_b32 v{t}, v{v}\ns_nop 1\nv_permlane{which}_swap_b32 v{v}, v{t}\n{op} v{v}, v{v}, v{t}")
    def rowred(op, v, rors):
        for r in rors: A(f"s_nop 1\n{op}_dpp v{v}, v{v}, v{v} row_ror:{r}{DPP}")
    def layernorm():
        for i in range(9): A(f"v_lshlrev_b32 v{8+2*i}, 16, v{40+i}\nv_and_b32 v{9+2*i}, 0xffff0000, v{40+i}")
        A("v_add_f32 v26, v8, v9")
        for i in range(2, 18): A(f"v_add_f32 v26, v26, v{8+i}")
        rowred("v_add_f32", 26, (8, 4, 2, 1)); swapred("v_add_f32", 26, 27, 16)
        A("v_mul_f32 v26, 0x3ae38e39, v26")
        for i in range(18): A(f"v_sub_f32 v{8+i}, v{8+i}, v26")
        A("v_mul_f32 v26, v8, v8")
        for i in range(1, 18): A(f"v_fmac_f32 v26, v{8+i}, v{8+i}")
        rowred("v_add_f32", 26, (8, 4, 2, 1)); swapred("v_add_f32", 26, 27, 16)
        A("v_mov_b32 v27, 0x3727c5ac\nv_fmac_f32 v27, 0x3ae38e39, v26\nv_rsq_f32 v27, v27\ns_nop 0")
        for i in range(18): A(f"v_mul_f32 v{8+i}, v{8+i}, v27")
        for i in range(9): A(f"v_cvt_pk_bf16_f32 v{40+i}, v{8+2*i}, v{9+2*i}\nds_write_b32 v51, v{40+i} offset:{i*128}")
    def dma(n, voff, soffs, label=None):
        for i in range(n):
            A(f"s_add_u32 m0, s69, {i*1024}"); A(soffs(i))
            A(f"buffer_load_dwordx4 v{voff}, s[16:19], s68 offen lds")
    def trread(n, dst):
        for i in range(n):
            A(f"ds_read_b64_tr_b16 v[{dst+4*i}:{dst+4*i+1}], v52 offset:{i*1024}\nds_read_b64_tr_b16 v[{dst+4*i+2}:{dst+4*i+3}], v52 offset:{i*1024+128}")
    def poll(loads, regs, first=None):
        l = lab("poll"); d = lab("pd")
        A("s_mov_b32 s67, 0x40000")
        if first is not None:
            f = lab("pf"); fd = lab("pfd"); A(f"{f}:"); first[0](); A("s_waitcnt vmcnt(0)")
            A(f"v_cmp_eq_u32 vcc, -1, v{first[1]}\ns_sub_u32 s67, s67, 1\ns_cbranch_scc1 {fd}\ns_cbranch_vccnz {f}\n{fd}:")
        A(f"{l}:"); loads(); A("s_waitcnt vmcnt(0)")
        A(f"v_max3_u32 v1, v{regs[0]}, v{regs[1]}, v{regs[2]}")
        r = regs[3:]
        while r:
            if len(r) >= 2: A(f"v_max3_u32 v1, v1, v{r[0]}, v{r[1]}"); r = r[2:]
            else: A(f"v_max_u32 v1, v1, v{r[0]}"); r = r[1:]
        A(f"v_cmp_eq_u32 vcc, -1, v1\ns_sub_u32 s67, s67, 1\ns_cbranch_scc1 {d}\ns_cbranch_vccnz {l}\n{d}:")

    A(HDR.rstrip())
    A(f"; @launch grid=(256,1,1) block=(512,1,1) lds={LDS}")
    A('.amdgcn_target "amdgcn-amd-amdhsa--gfx950"\n.text')
    A(f".globl {NAME}_kernel\n.p2align 8\n.type {NAME}_kernel,@function\n{NAME}_kernel:")
    A("s_cmp_ge_u32 s2, 256\ns_cbranch_scc1 L_exit")
    stamp(0)
    A("s_load_dwordx16 s[32:47], s[0:1], 0\ns_load_dwordx8 s[48:55], s[0:1], 64\ns_load_dwordx2 s[56:57], s[0:1], 96")
    A("v_lshrrev_b32 v1, 6, v0\nv_and_b32 v0, 63, v0\ns_and_b32 s61, s2, 7\nv_readfirstlane_b32 s60, v1")
    A("s_lshr_b32 s62, s2, 3\ns_lshr_b32 s3, s62, 4\ns_lshl_b32 s63, s61, 1\ns_add_u32 s63, s63, s3")
    A("s_and_b32 s66, s62, 15\ns_lshr_b32 s64, s66, 3\ns_and_b32 s65, s66, 7")
    A("s_mov_b32 s70, s62\ns_mul_i32 s71, s61, 18\ns_add_u32 s71, s71, s62\ns_sub_u32 s71, s71, 14")
    A("v_lshrrev_b32 v56, 4, v0\nv_lshlrev_b32 v56, 4, v56\nv_and_b32 v57, 1, v0")
    if stamps:
        for i in range(1, 8): A(f"s_mov_b32 s{80+2*i}, 0")
    A("s_waitcnt lgkmcnt(0)")
    srd(12, 56, 0x1000000)
    A("s_cmp_ge_u32 s60, 4\ns_cbranch_scc1 L_stream")
    srd(20, 32, 2304); srd(16, 38, 576 * 8192)
    A("v_lshrrev_b32 v1, 5, v0\nv_mul_u32_u24 v1, 1152, v1\nv_and_b32 v2, 31, v0\nv_lshl_add_u32 v50, v2, 2, v1")
    for i in range(9): A(f"buffer_load_dword v{40+i}, v50, s[20:23], 0 offen offset:{i*128}")
    A("v_mov_b32 v1, 0\nbuffer_load_dword v201, v1, s[12:15], 0 offen sc1")
    A("v_lshrrev_b32 v1, 1, v0\nv_lshlrev_b32 v2, 4, v57\nv_lshl_add_u32 v53, v1, 13, v2")
    A("s_movk_i32 s3, 1152\nv_mad_u32_u24 v54, v1, s3, v2\ns_movk_i32 s3, 9216\nv_mad_u32_u24 v55, v1, s3, v2")
    A(f"s_lshl_b32 s69, s60, 14\ns_add_u32 s69, s69, {STG}")
    A("s_lshl_b32 s72, s63, 9\ns_lshl_b32 s3, s66, 5\ns_add_u32 s72, s72, s3\ns_lshl_b32 s3, s60, 18\ns_add_u32 s72, s72, s3")
    dma(4, 53, lambda i: f"s_add_u32 s68, s72, {i << 20}")
    A("s_cmp_ge_u32 s60, 2\ns_cbranch_scc1 L_h1")
    A(f"s_add_u32 m0, s69, 4096\ns_add_u32 s68, s72, {4 << 20}\nbuffer_load_dwordx4 v53, s[16:19], s68 offen lds\nL_h1:")
    if b0: A("s_barrier")
    A(f"s_mul_i32 s73, s60, 2560\nv_add_u32 v51, s73, v50")
    A("v_bfe_u32 v1, v0, 2, 2\nv_lshlrev_b32 v1, 5, v1\nv_lshl_add_u32 v1, v56, 4, v1\nv_and_b32 v2, 3, v0\nv_lshl_add_u32 v1, v2, 3, v1\nv_add_u32 v52, s69, v1")
    A("v_mul_u32_u24 v1, 1152, v57\nv_add3_u32 v58, v1, v56, s73")
    A("s_waitcnt vmcnt(4)")
    layernorm()
    A("s_mov_b32 s3, 0x9e3779b1\nv_mul_lo_u32 v201, v201, s3\nv_add_u32 v201, 0x7f4a7c15, v201")
    A("s_lshl_b32 s3, s60, 6\nv_add_u32 v1, s3, v58\ns_waitcnt vmcnt(0) lgkmcnt(0)")
    trread(4, 64)
    for i in range(4): A(f"ds_read_b128 v[{8+4*i}:{11+4*i}], v1 offset:{i*256}")
    A("v_mov_b32 v28, 0\nv_mov_b32 v29, 0\nv_mov_b32 v30, 0\nv_mov_b32 v31, 0")
    A("s_cmp_ge_u32 s60, 2\ns_cbranch_scc1 L_h2")
    A("ds_read_b64_tr_b16 v[80:81], v52 offset:4096\nds_read_b64_tr_b16 v[82:83], v52 offset:4224\nds_read_b128 v[24:27], v1 offset:1024")
    A("s_waitcnt lgkmcnt(0)\nv_mfma_f32_16x16x32_bf16 v[28:31], v[80:83], v[24:27], v[28:31]\nL_h2:\ns_waitcnt lgkmcnt(0)")
    for i in range(4): A(f"v_mfma_f32_16x16x32_bf16 v[28:31], v[{64+4*i}:{67+4*i}], v[{8+4*i}:{11+4*i}], v[28:31]")
    A(f"s_lshl_b32 s3, s60, 7\ns_add_u32 s3, s3, {QP}\nv_lshl_add_u32 v1, v57, 6, v56\nv_add_u32 v1, s3, v1\ns_nop 4")
    A("ds_write_b128 v1, v[28:31]\ns_waitcnt lgkmcnt(0)\ns_barrier")
    A("s_cmp_lg_u32 s60, 0\ns_cbranch_scc1 L_h3")
    A(f"v_and_b32 v2, 15, v0\nv_lshlrev_b32 v1, 3, v2")
    for i in range(4): A(f"ds_read_b64 v[{8+2*i}:{9+2*i}], v1 offset:{QP+i*128}")
    A(f"v_lshrrev_b32 v3, 3, v2\nv_lshlrev_b32 v3, 14, v3\nv_and_b32 v2, 7, v2\nv_lshl_add_u32 v3, v2, 3, v3")
    A(f"s_lshl_b32 s74, s63, 10\ns_add_u32 s74, s74, {WS_Q}\ns_lshl_b32 s3, s66, 6\ns_add_u32 s3, s3, s74\ns_waitcnt lgkmcnt(0)")
    A("v_add_f32 v8, v8, v10\nv_add_f32 v9, v9, v11\nv_add_f32 v12, v12, v14\nv_add_f32 v13, v13, v15\nv_add_f32 v8, v8, v12\nv_add_f32 v9, v9, v13")
    A("v_cvt_pk_bf16_f32 v8, v8, v9\nv_mov_b32 v9, v201\ns_mov_b64 exec, 0xffff")
    A("buffer_store_dwordx2 v[8:9], v3, s[12:15], s3 offen sc1\ns_mov_b64 exec, -1")
    A("s_lshl_b32 s3, s64, 14\ns_add_u32 s74, s74, s3\nv_lshlrev_b32 v3, 4, v0\ns_mov_b32 s67, 0x40000\nL_qpoll:")
    A("buffer_load_dwordx4 v[12:15], v3, s[12:15], s74 offen sc1\ns_waitcnt vmcnt(0)")
    A("v_cmp_ne_u32 vcc, v13, v201\nv_cmp_ne_u32 s[76:77], v15, v201\ns_or_b64 vcc, vcc, s[76:77]")
    A("s_sub_u32 s67, s67, 1\ns_cbranch_scc1 L_qd\ns_cbranch_vccnz L_qpoll\nL_qd:")
    A(f"v_mov_b32 v13, v14\nv_lshlrev_b32 v3, 3, v0\nds_write_b64 v3, v[12:13] offset:{QL}\ns_waitcnt lgkmcnt(0)\nL_h3:")
    A("s_cmp_lg_u32 s60, 3\ns_cbranch_scc1 L_h4")
    for i in range(4): A(f"v_mov_b32 v{8+i}, -1")
    A("s_lshl_b32 s3, s64, 5\ns_lshl_b32 s74, s63, 1\ns_add_u32 s3, s3, s74\ns_lshl_b32 s3, s3, 3\ns_add_u32 s3, s3, s65")
    A(f"s_lshl_b32 s74, s3, 9\ns_add_u32 s74, s74, {WS_A}\ns_lshl_b32 s75, s3, 3\ns_add_u32 s75, s75, {WS_ML}")
    A("v_lshrrev_b32 v1, 5, v0\nv_and_b32 v2, 31, v0\nv_lshlrev_b32 v3, 12, v1\nv_lshl_add_u32 v3, v2, 4, v3\nv_lshlrev_b32 v4, 6, v1")
    A("buffer_store_dwordx4 v[8:11], v3, s[12:15], s74 offen sc1\nbuffer_store_dwordx2 v[8:9], v4, s[12:15], s75 offen sc1")
    A("s_cmp_ge_u32 s62, 18\ns_cbranch_scc1 L_c1")
    A(f"s_mul_i32 s3, s61, 4608\ns_lshl_b32 s74, s70, 7\ns_add_u32 s3, s3, s74\ns_add_u32 s3, s3, {WS_H}")
    A("v_mul_u32_u24 v3, 2304, v1\nv_lshl_add_u32 v3, v2, 2, v3\nbuffer_store_dword v8, v3, s[12:15], s3 offen sc1\nL_c1:")
    A("s_cmp_lt_u32 s62, 14\ns_cbranch_scc1 L_c2")
    A(f"s_mul_i32 s3, s71, 4608\ns_add_u32 s3, s3, {WS_P}\nv_lshlrev_b32 v3, 4, v0\nv_lshlrev_b32 v4, 3, v0\ns_add_u32 s74, s3, 4096")
    for i in range(4): A(f"buffer_store_dwordx4 v[8:11], v3, s[12:15], s3 offen offset:{i*1024} sc1")
    A("buffer_store_dwordx2 v[8:9], v4, s[12:15], s74 offen sc1\nL_c2:")
    srd(24, 54, 256)
    A("s_waitcnt vmcnt(0)\nv_mov_b32 v1, 0\nv_mov_b32 v2, 1\ns_mov_b64 exec, 1\nbuffer_atomic_add v2, v1, s[24:27], 0 offen sc1\ns_mov_b64 exec, -1\nL_h4:")
    A("s_barrier")
    stamp(2)
    A("s_cmp_ge_u32 s62, 18\ns_cbranch_scc1 L_w1\ns_cmp_ge_u32 s60, 2\ns_cbranch_scc1 L_w1")
    srd(16, 40, 4096 * 1152)
    A(f"s_mul_i32 s72, s61, {512*1152}\ns_lshl_b32 s3, s70, 6\ns_add_u32 s72, s72, s3\ns_lshl_b32 s3, s60, 5\ns_add_u32 s72, s72, s3")
    dma(16, 54, lambda i: f"s_add_u32 s68, s72, {i*32*1152}")
    A("s_waitcnt vmcnt(0)"); trread(16, 64); A("s_waitcnt lgkmcnt(0)\nL_w1:")
    A("s_cmp_lt_u32 s62, 14\ns_cbranch_scc1 L_w2")
    srd(16, 44, 576 * 9216)
    A(f"s_lshr_b32 s3, s60, 1\ns_mul_i32 s72, s3, {288*9216}\ns_lshl_b32 s3, s71, 6\ns_add_u32 s72, s72, s3\ns_and_b32 s3, s60, 1\ns_lshl_b32 s3, s3, 5\ns_add_u32 s72, s72, s3")
    dma(9, 55, lambda i: f"s_add_u32 s68, s72, {i*32*9216}")
    A("s_waitcnt vmcnt(0)"); trread(9, 128); A("s_waitcnt lgkmcnt(0)")
    srd(16, 48, 4608 * 1152)
    A(f"s_mul_i32 s72, s71, {32*1152}\ns_mul_i32 s3, s60, 288\ns_add_u32 s72, s72, s3")
    dma(9, 54, lambda i: f"s_add_u32 s68, s72, {i*32}")
    srd(24, 46, 9216)
    A("v_and_b32 v1, 31, v0\nv_lshlrev_b32 v1, 1, v1\ns_lshl_b32 s3, s71, 6\nbuffer_load_ushort v200, v1, s[24:27], s3 offen")
    srd(24, 50, 1152)
    A("s_cmp_ge_u32 s71, 72\ns_cselect_b32 s3, 72, 0\ns_sub_u32 s3, s71, s3\ns_lshl_b32 s3, s3, 4\nv_lshlrev_b32 v1, 3, v57\nbuffer_load_dwordx2 v[202:203], v1, s[24:27], s3 offen")
    A("s_waitcnt vmcnt(0)"); trread(9, 164); A("v_lshlrev_b32 v200, 16, v200\ns_waitcnt lgkmcnt(0)\nL_w2:")
    A("s_cmp_lg_u32 s60, 3\ns_cbranch_scc1 L_w3")
    srd(24, 54, 256)
    A("s_mov_b32 s67, 0x40000\nv_mov_b32 v1, 0\nL_cpoll:\nbuffer_load_dword v2, v1, s[24:27], 0 offen sc1\ns_waitcnt vmcnt(0)")
    A("v_cmp_gt_u32 vcc, 0x100, v2\ns_sub_u32 s67, s67, 1\ns_cbranch_scc1 L_w3\ns_cbranch_vccnz L_cpoll\nL_w3:")
    stamp(3)
    A("s_barrier\ns_branch L_tail")
    A("L_stream:")
    A("s_lshl_b32 s3, s64, 4\ns_add_u32 s3, s3, s63\ns_lshl_b32 s3, s3, 3\ns_add_u32 s3, s3, s65\ns_lshl_b32 s3, s3, 20")
    A("s_sub_u32 s72, s60, 4\ns_lshl_b32 s73, s72, 12\ns_add_u32 s3, s3, s73")
    A("s_add_u32 s4, s34, s3\ns_addc_u32 s5, s35, 0\ns_sub_u32 s6, 0x10000000, s3\ns_mov_b32 s7, 0x20000")
    A("s_add_u32 s8, s36, s3\ns_addc_u32 s9, s37, 0\ns_mov_b32 s10, s6\ns_mov_b32 s11, 0x20000")
    A("v_lshlrev_b32 v2, 4, v0\nv_and_b32 v4, 3, v0\nv_lshlrev_b32 v4, 10, v4\nv_bfe_u32 v5, v0, 2, 2\nv_lshlrev_b32 v5, 8, v5\nv_add3_u32 v3, v4, v5, v56")
    A("s_mov_b32 s28, 0\ns_mov_b32 s31, 0\ns_mov_b32 s30, 0x3e0293ee")
    vK = lambda s: 64 + s * 32
    vV = lambda s: 64 + s * 32 + 16
    def loadK(s):
        for kk in range(4): A(f"buffer_load_dwordx4 v[{vK(s)+4*kk}:{vK(s)+4*kk+3}], v3, s[4:7], s28 offen offset:{kk*64} nt")
    def loadV(s):
        for r in range(4): A(f"buffer_load_dwordx4 v[{vV(s)+4*r}:{vV(s)+4*r+3}], v2, s[8:11], s28 offen offset:{r*1024} nt")
    if b0: A("s_barrier")
    for s in range(NS):
        loadK(s); loadV(s); A("s_add_u32 s28, s28, 16384")
    A("v_cmp_eq_u32 vcc, 1, v57\nv_mov_b32 v9, 0xffff\nv_mov_b32 v10, 0xffff0000\nv_cndmask_b32 v9, v9, v10, vcc\nv_bfe_u32 v8, v0, 1, 2")
    for w in range(4): A(f"v_cmp_eq_u32 vcc, {w}, v8\ns_nop 1\nv_cndmask_b32 v{4+w}, 0, v9, vcc")
    A("v_mov_b32 v24, 0xff7fffff\nv_mov_b32 v25, 0")
    for i in range(28, 32): A(f"v_mov_b32 v{i}, 0")
    A("v_bfe_u32 v1, v0, 3, 1\nv_lshl_add_u32 v1, v1, 8, v56\ns_barrier\ns_barrier")
    for kk in range(4): A(f"ds_read_b128 v[{8+4*kk}:{11+4*kk}], v1 offset:{QL+kk*64}")
    stamp(2)
    if prio: A(f"s_setprio {prio}")
    A("s_waitcnt lgkmcnt(0)\nL_loop:")
    nsteps = 64
    for s in range(NS):
        A(f"s_add_u32 s31, s31, 1\ns_cmp_le_u32 s31, {nsteps-NS}\ns_cselect_b32 s6, s6, 0\ns_cselect_b32 s10, s10, 0")
        A(f"s_waitcnt vmcnt({(2*NS-1)*4})")
        for kk in range(4):
            A(f"v_mfma_f32_16x16x32_bf16 v[32:35], v[{vK(s)+4*kk}:{vK(s)+4*kk+3}], v[{8+4*kk}:{11+4*kk}], {'0' if kk == 0 else 'v[32:35]'}")
        loadK(s)
        A("s_nop 4\nv_max3_f32 v26, v32, v33, v34\nv_max_f32 v26, v26, v35")
        swapred("v_max_f32", 26, 27, 32)
        A("v_mov_b32 v27, v26\ns_nop 1\nv_permlane16_swap_b32 v26, v27\nv_max3_f32 v26, v26, v27, v24")
        A("v_sub_f32 v27, v24, v26\nv_mul_f32 v27, s30, v27\nv_exp_f32 v27, v27\nv_mov_b32 v24, v26\nv_mul_f32 v26, s30, v26")
        for i in range(4): A(f"v_fma_f32 v{32+i}, v{32+i}, s30, -v26")
        for i in range(4): A(f"v_exp_f32 v{32+i}, v{32+i}")
        A("v_mul_f32 v25, v25, v27")
        for i in range(4): A(f"v_mul_f32 v{28+i}, v{28+i}, v27")
        for i in range(4): A(f"v_add_f32 v25, v25, v{32+i}")
        for i in range(4): A(f"v_cvt_pk_bf16_f32 v{32+i}, v{32+i}, v{32+i}")
        A(f"s_waitcnt vmcnt({(2*NS-1)*4})")
        for i in range(4):
            for w in range(4): A(f"v_and_b32 v{36+w}, v{32+i}, v{4+w}")
            A(f"s_nop 1\nv_mfma_f32_16x16x32_bf16 v[28:31], v[{vV(s)+4*i}:{vV(s)+4*i+3}], v[36:39], v[28:31]")
        loadV(s)
        A(f"s_add_u32 s28, s28, 16384\ns_cmp_ge_u32 s31, {nsteps}\ns_cbranch_scc1 L_done")
    A("s_branch L_loop\nL_done:")
    stamp(3)
    swapred("v_add_f32", 25, 27, 32); swapred("v_add_f32", 25, 27, 16)
    A(f"v_mul_f32 v24, s30, v24\nv_bfe_u32 v1, v0, 3, 1\nv_and_b32 v2, 7, v0\nv_lshlrev_b32 v3, 9, v1\nv_lshl_add_u32 v3, v56, 3, v3\nv_lshl_add_u32 v3, v2, 2, v3")
    A(f"s_lshl_b32 s3, s72, 10\nv_add_u32 v3, s3, v3\ns_lshl_b32 s3, s72, 4\nv_lshl_add_u32 v1, v1, 3, s3")
    for r in range(4): A(f"ds_write_b32 v3, v{28+r} offset:{OA+r*32}")
    A(f"ds_write_b64 v1, v[24:25] offset:{MLW}\ns_waitcnt lgkmcnt(0)\ns_barrier")
    A("s_cmp_lg_u32 s60, 4\ns_cbranch_scc1 L_tail")
    A("v_lshlrev_b32 v3, 4, v0\nv_lshrrev_b32 v1, 5, v0\nv_lshlrev_b32 v4, 3, v1")
    for w in range(4): A(f"ds_read_b64 v[{24+2*w}:{25+2*w}], v4 offset:{MLW+w*16}")
    for w in range(4): A(f"ds_read_b128 v[{8+4*w}:{11+4*w}], v3 offset:{OA+w*1024}")
    A("s_lshl_b32 s3, s64, 5\ns_lshl_b32 s74, s63, 1\ns_add_u32 s3, s3, s74\ns_lshl_b32 s3, s3, 3\ns_add_u32 s3, s3, s65")
    A(f"s_lshl_b32 s74, s3, 9\ns_add_u32 s74, s74, {WS_A}\ns_lshl_b32 s75, s3, 3\ns_add_u32 s75, s75, {WS_ML}")
    A("v_and_b32 v2, 31, v0\nv_lshlrev_b32 v3, 12, v1\nv_lshl_add_u32 v3, v2, 4, v3\nv_lshlrev_b32 v4, 6, v1\ns_waitcnt lgkmcnt(4)")
    A("v_max3_f32 v32, v24, v26, v28\nv_max_f32 v32, v32, v30")
    for w in range(4): A(f"v_sub_f32 v{24+2*w}, v{24+2*w}, v32")
    for w in range(4): A(f"v_exp_f32 v{24+2*w}, v{24+2*w}")
    A("s_nop 0\nv_mul_f32 v33, v24, v25\nv_fmac_f32 v33, v26, v27\nv_fmac_f32 v33, v28, v29\nv_fmac_f32 v33, v30, v31\ns_waitcnt lgkmcnt(0)")
    for r in range(4): A(f"v_mul_f32 v{8+r}, v{8+r}, v24")
    for w in range(1, 4):
        for r in range(4): A(f"v_fmac_f32 v{8+r}, v{8+4*w+r}, v{24+2*w}")
    for r in (8, 9, 10, 11, 32, 33): A(f"v_min_u32 v{r}, -2, v{r}")
    A("buffer_store_dwordx4 v[8:11], v3, s[12:15], s74 offen sc1\ns_mov_b32 exec_lo, 1\ns_mov_b32 exec_hi, 1")
    A("buffer_store_dwordx2 v[32:33], v4, s[12:15], s75 offen sc1\ns_mov_b64 exec, -1")
    A("L_tail:\ns_cmp_ge_u32 s62, 18\ns_cbranch_scc1 L_mlp")
    A("s_lshr_b32 s3, s60, 2\ns_lshl_b32 s3, s3, 5\ns_lshl_b32 s74, s61, 2\ns_add_u32 s3, s3, s74\ns_and_b32 s74, s60, 3\ns_add_u32 s3, s3, s74")
    A(f"s_lshl_b32 s74, s3, 12\ns_add_u32 s74, s74, {WS_A}\ns_lshl_b32 s75, s3, 6\ns_add_u32 s75, s75, {WS_ML}")
    A("v_lshlrev_b32 v3, 4, v0\nv_lshrrev_b32 v1, 5, v0\nv_xor_b32 v4, v0, v1\nv_and_b32 v4, 7, v4\nv_lshlrev_b32 v4, 3, v4")
    ldml = lambda: A("buffer_load_dwordx2 v[24:25], v4, s[12:15], s75 offen sc1")
    def ldA():
        ldml()
        for i in range(4): A(f"buffer_load_dwordx4 v[{8+4*i}:{11+4*i}], v3, s[12:15], s74 offen offset:{i*1024} sc1")
    poll(ldA, list(range(8, 26)), (ldml, 25) if twolevel else None)
    stamp(4)
    A("v_mov_b32 v26, v24"); rowred("v_max_f32", 26, (4, 2, 1))
    A("v_sub_f32 v24, v24, v26\nv_exp_f32 v24, v24\ns_nop 0\nv_mul_f32 v25, v24, v25"); rowred("v_add_f32", 25, (4, 2, 1))
    A("v_rcp_f32 v25, v25\ns_nop 0\nv_mul_f32 v24, v24, v25\ns_nop 1")
    for r in range(4): A(f"v_mul_f32_dpp v{28+r}, v24, v{8+r} row_newbcast:0{DPP}")
    for i in range(1, 4):
        for r in range(4): A(f"v_fmac_f32_dpp v{28+r}, v24, v{8+4*i+r} row_newbcast:{2*i}{DPP}")
    for r in range(4): A(f"v_mov_b32 v{32+r}, v{28+r}")
    A("s_nop 0")
    for r in range(4): A(f"v_permlane32_swap_b32 v{28+r}, v{32+r}")
    for r in range(4): A(f"v_add_f32 v{28+r}, v{28+r}, v{32+r}")
    A(f"v_cvt_pk_bf16_f32 v28, v28, v29\nv_cvt_pk_bf16_f32 v29, v30, v31\ns_lshr_b32 s3, s60, 2\ns_mul_i32 s3, s3, 1040\ns_and_b32 s74, s60, 3\ns_lshl_b32 s74, s74, 8\ns_add_u32 s3, s3, s74")
    A(f"v_and_b32 v1, 31, v0\nv_lshl_add_u32 v1, v1, 3, s3\nds_write_b64 v1, v[28:29] offset:{OB}\ns_waitcnt lgkmcnt(0)\ns_barrier")
    A("s_cmp_ge_u32 s60, 2\ns_cbranch_scc1 L_a1")
    A("v_mul_u32_u24 v1, 1040, v57\nv_add_u32 v1, v1, v56")
    oreg = lambda i: 8 + 4 * i if i < 8 else 204 + 4 * (i - 8)
    for i in range(16): A(f"ds_read_b128 v[{oreg(i)}:{oreg(i)+3}], v1 offset:{OB+i*64}")
    A(f"s_mul_i32 s3, s61, 4608\ns_lshl_b32 s74, s70, 7\ns_add_u32 s3, s3, s74\ns_lshl_b32 s74, s60, 6\ns_add_u32 s3, s3, s74\ns_add_u32 s3, s3, {WS_H}")
    A("v_mul_u32_u24 v2, 2304, v57\nv_add_u32 v2, v2, v56")
    for i in range(16):
        A(f"s_waitcnt lgkmcnt({15-i})\nv_mfma_f32_16x16x32_bf16 v[40:43], v[{64+4*i}:{67+4*i}], v[{oreg(i)}:{oreg(i)+3}], {'0' if i == 0 else 'v[40:43]'}")
    A("s_nop 7")
    for r in range(4): A(f"v_min_u32 v{40+r}, -2, v{40+r}")
    A(M8 + "\nbuffer_store_dwordx4 v[40:43], v2, s[12:15], s3 offen sc1\ns_mov_b64 exec, -1\nL_a1:")
    stamp(5)
    A("s_cmp_ge_u32 s62, 14\ns_cbranch_scc1 L_mlp"); fin()
    A("L_mlp:"); srd(20, 32, 2304)
    A("s_lshr_b32 s3, s60, 2\ns_mul_i32 s3, s3, 576\ns_and_b32 s74, s60, 3\ns_mul_i32 s74, s74, 144\ns_add_u32 s3, s3, s74")
    A("v_min_u32 v1, 35, v0\nv_lshl_add_u32 v1, v1, 2, s3\nv_lshlrev_b32 v3, 2, v1\nv_lshlrev_b32 v4, 1, v1")
    A("buffer_load_dwordx2 v[44:45], v4, s[20:23], 0 offen")
    def ldB(rng=range(8)):
        for i in rng: A(f"s_mov_b32 s3, {WS_H+i*4608}\nbuffer_load_dwordx4 v[{8+4*i}:{11+4*i}], v3, s[12:15], s3 offen sc1")
    poll(ldB, list(range(8, 40)), ((lambda: ldB([7])), 39) if twolevel else None)
    stamp(6)
    for a, b in ((0, 1), (2, 3), (4, 5), (6, 7), (0, 2), (4, 6), (0, 4)):
        for r in range(4): A(f"v_add_f32 v{8+4*a+r}, v{8+4*a+r}, v{8+4*b+r}")
    def addbf(dst, a, b):
        for k in range(2):
            A(f"v_lshlrev_b32 v12, 16, v{a+k}\nv_and_b32 v13, 0xffff0000, v{a+k}\nv_lshlrev_b32 v14, 16, v{b+k}\nv_and_b32 v15, 0xffff0000, v{b+k}")
            A(f"v_add_f32 v12, v12, v14\nv_add_f32 v13, v13, v15\nv_cvt_pk_bf16_f32 v{dst+k}, v12, v13")
    A("v_cvt_pk_bf16_f32 v8, v8, v9\nv_cvt_pk_bf16_f32 v9, v10, v11")
    addbf(8, 8, 44)
    A(f"ds_write_b64 v4, v[8:9] offset:{HB}\ns_waitcnt lgkmcnt(0)\ns_barrier")
    A("s_cmp_lt_u32 s60, 4\ns_cbranch_scc1 L_m1"); fin()
    A("L_m1:")
    for i in range(9): A(f"ds_read_b32 v{40+i}, v50 offset:{HB+i*128}")
    A("s_waitcnt lgkmcnt(0)")
    layernorm()
    A("s_lshr_b32 s3, s60, 1\ns_mul_i32 s74, s3, 576\nv_add_u32 v1, s74, v58\ns_waitcnt lgkmcnt(0)")
    for i in range(9): A(f"ds_read_b128 v[{204+4*i}:{207+4*i}], v1 offset:{i*64}")
    A(f"s_lshl_b32 s3, s3, 8\ns_and_b32 s74, s60, 1\ns_lshl_b32 s74, s74, 6\ns_add_u32 s3, s3, s74\nv_lshl_add_u32 v2, v57, 7, v56\nv_add_u32 v2, s3, v2")
    for i in range(9):
        A(f"s_waitcnt lgkmcnt({8-i})\nv_mfma_f32_16x16x32_bf16 v[40:43], v[{128+4*i}:{131+4*i}], v[{204+4*i}:{207+4*i}], {'0' if i == 0 else 'v[40:43]'}")
    A(f"v_lshlrev_b32 v1, 2, v0\ns_nop 6\nds_write_b128 v2, v[40:43] offset:{W1P}\ns_waitcnt lgkmcnt(0)\ns_barrier")
    A(f"ds_read_b32 v8, v1 offset:{W1P}\nds_read_b32 v9, v1 offset:{W1P+256}")
    A(f"s_lshl_b32 s3, s60, 7\nv_lshl_add_u32 v2, v0, 1, s3\nv_lshl_add_u32 v3, v57, 6, v56\nv_add_u32 v3, s3, v3\ns_waitcnt lgkmcnt(0)")
    A("v_add_f32 v8, v8, v9\nv_cvt_pk_bf16_f32 v8, v8, v8\nv_lshlrev_b32 v8, 16, v8\nv_add_f32 v8, v8, v200\nv_cvt_pk_bf16_f32 v8, v8, v8\nv_lshlrev_b32 v8, 16, v8")
    A("v_mul_f32 v9, v8, v8\nv_mov_b32 v10, 1.0\nv_fmac_f32 v10, 0x3d372713, v9\nv_mul_f32 v10, v10, v8\nv_mul_f32 v10, 0xc0135761, v10\nv_exp_f32 v10, v10\ns_nop 0")
    A("v_add_f32 v10, 1.0, v10\nv_rcp_f32 v10, v10\ns_nop 0\nv_mul_f32 v8, v8, v10\nv_cvt_pk_bf16_f32 v8, v8, v8")
    A(f"ds_write_b16 v2, v8 offset:{GL}\ns_waitcnt lgkmcnt(0)\nds_read_b128 v[44:47], v3 offset:{GL}")
    A(f"s_mul_i32 s3, s71, 4608\ns_mul_i32 s74, s60, 576\ns_add_u32 s3, s3, s74\ns_add_u32 s3, s3, {WS_P}\nv_mul_u32_u24 v2, 2304, v57\nv_add_u32 v2, v2, v56\ns_waitcnt lgkmcnt(0)")
    for i in range(9): A(f"v_mfma_f32_16x16x32_bf16 v[{8+4*i}:{11+4*i}], v[{164+4*i}:{167+4*i}], v[44:47], 0")
    A(M8)
    for i in range(9):
        if i >= 7: A("s_nop 3")
        for r in range(4): A(f"v_min_u32 v{8+4*i+r}, -2, v{8+4*i+r}")
        A(f"buffer_store_dwordx4 v[{8+4*i}:{11+4*i}], v2, s[12:15], s3 offen offset:{i*64} sc1")
    A("s_mov_b64 exec, -1")
    stamp(7)
    A("s_cmp_eq_u32 s60, 0\ns_cbranch_scc1 L_m2"); fin()
    A("L_m2:\nv_lshrrev_b32 v1, 1, v0\nv_mul_u32_u24 v1, 4608, v1\nv_lshl_add_u32 v3, v57, 4, v1")
    A("v_cmp_gt_u32 vcc, 32, v0\nv_mov_b32 v5, 0x7f000000\ns_lshl_b32 s75, s71, 4\nv_cndmask_b32 v4, v5, v3, vcc")
    A(f"v_lshl_add_u32 v5, v57, 3, s75\nds_read_b64 v[46:47], v5 offset:{HB}\ns_lshl_b32 s74, s71, 5\ns_add_u32 s74, s74, {WS_P}")
    def ldC():
        for i in range(5): A(f"s_add_u32 s3, s74, {i*32*4608}\nbuffer_load_dwordx4 v[{48+4*i}:{51+4*i}], v{3 if i < 4 else 4}, s[12:15], s3 offen sc1")
    poll(ldC, list(range(48, 68)))
    for a, b in ((0, 1), (2, 3), (0, 2), (0, 4)):
        for r in range(4): A(f"v_add_f32 v{48+4*a+r}, v{48+4*a+r}, v{48+4*b+r}")
    for m in ("quad_perm:[2,3,0,1]", "row_ror:4", "row_ror:8"):
        for r in range(4): A(f"v_add_f32_dpp v{48+r}, v{48+r}, v{48+r} {m}{DPP}")
    for wch in (16, 32):
        for r in range(4): A(f"v_mov_b32 v{52+r}, v{48+r}")
        A("s_nop 0")
        for r in range(4): A(f"v_permlane{wch}_swap_b32 v{48+r}, v{52+r}")
        for r in range(4): A(f"v_add_f32 v{48+r}, v{48+r}, v{52+r}")
    A("v_cvt_pk_bf16_f32 v8, v48, v49\nv_cvt_pk_bf16_f32 v9, v50, v51\ns_waitcnt lgkmcnt(0)")
    addbf(8, 8, 202); addbf(8, 8, 46)
    srd(20, 52, 2304)
    A("s_mov_b64 exec, 3\nbuffer_store_dwordx2 v[8:9], v5, s[20:23], 0 offen")
    A("s_cmp_lg_u32 s71, 0\ns_cbranch_scc1 L_m3\ns_mov_b64 exec, 1\nv_mov_b32 v1, 0\nbuffer_store_dword v201, v1, s[12:15], 0 offen\nL_m3:")
    fin()
    A("L_exit:\ns_endpgm")
    A(f""".section .rodata,"a"
.p2align 6
.amdhsa_kernel {NAME}_kernel
  .amdhsa_next_free_vgpr 256
  .amdhsa_next_free_sgpr 102
  .amdhsa_accum_offset 256
  .amdhsa_group_segment_fixed_size 0
  .amdhsa_kernarg_size 104
  .amdhsa_user_sgpr_count 2
  .amdhsa_user_sgpr_kernarg_segment_ptr 1
  .amdhsa_system_sgpr_workgroup_id_x 1
.end_amdhsa_kernel""")
    return "\n".join(L) + "\n"

if __name__ == "__main__":
    for a in sys.argv[1:]:
        name, _, kw = a.partition(":")
        open(name, "w").write(gen(**eval(f"dict({kw})")))
```

```python
import sys
NAME = "sequential_preLN__gqa_block_cached__dense_activation_gelu__decode"
HDR = open("cdna_kernels/" + NAME + ".s.ref").read().split("; Override launch")[0]
WS_CNT, WS_CL = 0xA000, 0xD000
WS_Q, WS_ML, WS_A, WS_H, WS_P = 0x1000, 0x10000, 0x20000, 0x80000, 0x100000
XN, QP, QL, OA, MLW, OB, HB, W1P, GL, CNT, STAT, STG = 0, 10240, 10752, 11264, 15360, 15488, 17664, 21120, 21888, 22400, 22416, 23040
TBL = 22528
LDS = STG + 73728
NA = 9
DPP = " row_mask:0xf bank_mask:0xf"
M8 = "s_mov_b32 exec_lo, 0x00030003\ns_mov_b32 exec_hi, 0x00030003"

def gen(NS=3, stamps=False, twolevel=False, b0=True, prio=0, hs=False, weights=True, wnt=' nt', qnt=' nt', thr=0, S=48, rot=0, dyn=True, TRIG=21):
    L = []; A = L.append
    uid = [0]
    def lab(p):
        uid[0] += 1; return f"L_{p}{uid[0]}"
    def stamp(i):
        if stamps: A(f"s_memrealtime s[{80+2*i}:{81+2*i}]")
    def fin():
        if stamps:
            stamp(1); A("s_mov_b64 exec, -1\ns_waitcnt lgkmcnt(0)")
            for i in range(8): A(f"v_mov_b32 v{8+i}, s{80+2*i}")
            A("s_lshl_b32 s3, s2, 3\ns_add_u32 s3, s3, s60\ns_lshl_b32 s3, s3, 6\ns_add_u32 s3, s3, 0x800000\nv_mov_b32 v1, 0")
            A("buffer_store_dwordx4 v[8:11], v1, s[12:15], s3 offen\nbuffer_store_dwordx4 v[12:15], v1, s[12:15], s3 offen offset:16")
        A("s_endpgm")
    def srd(d, p, size):
        A(f"s_mov_b32 s{d}, s{p}\ns_mov_b32 s{d+1}, s{p+1}\ns_mov_b32 s{d+2}, {size}\ns_mov_b32 s{d+3}, 0x20000")
    def swapred(op, v, t, which):
        A(f"v_mov_b32 v{t}, v{v}\ns_nop 1\nv_permlane{which}_swap_b32 v{v}, v{t}\n{op} v{v}, v{v}, v{t}")
    def rowred(op, v, rors):
        for r in rors: A(f"s_nop 1\n{op}_dpp v{v}, v{v}, v{v} row_ror:{r}{DPP}")
    def layernorm(stats=False):
        for i in range(9): A(f"v_lshlrev_b32 v{8+2*i}, 16, v{40+i}\nv_and_b32 v{9+2*i}, 0xffff0000, v{40+i}")
        A("v_add_f32 v26, v8, v9")
        for i in range(2, 18): A(f"v_add_f32 v26, v26, v{8+i}")
        rowred("v_add_f32", 26, (8, 4, 2, 1)); swapred("v_add_f32", 26, 27, 16)
        A("v_mul_f32 v26, 0x3ae38e39, v26\nv_mov_b32 v28, v26")
        for i in range(18): A(f"v_sub_f32 v{8+i}, v{8+i}, v26")
        A("v_mul_f32 v26, v8, v8")
        for i in range(1, 18): A(f"v_fmac_f32 v26, v{8+i}, v{8+i}")
        rowred("v_add_f32", 26, (8, 4, 2, 1)); swapred("v_add_f32", 26, 27, 16)
        A("v_mov_b32 v27, 0x3727c5ac\nv_fmac_f32 v27, 0x3ae38e39, v26\nv_rsq_f32 v27, v27\ns_nop 0")
        if stats: return
        for i in range(18): A(f"v_mul_f32 v{8+i}, v{8+i}, v27")
        for i in range(9): A(f"v_cvt_pk_bf16_f32 v{40+i}, v{8+2*i}, v{9+2*i}\nds_write_b32 v51, v{40+i} offset:{i*128}")
    def dma(n, voff, soffs, pol):
        for i in range(n):
            A(f"s_add_u32 m0, s69, {i*1024}"); A(soffs(i))
            A(f"buffer_load_dwordx4 v{voff}, s[16:19], s68 offen{pol} lds")
    def trread(n, dst, va=52, step=1024, row=32):
        for i in range(n):
            A(f"ds_read_b64_tr_b16 v[{dst+4*i}:{dst+4*i+1}], v{va} offset:{i*step}\nds_read_b64_tr_b16 v[{dst+4*i+2}:{dst+4*i+3}], v{va} offset:{i*step+4*row}")
    def traddr(va, row, sbase):
        A(f"v_lshrrev_b32 v1, 1, v56\nv_bfe_u32 v2, v0, 2, 2\nv_add_u32 v1, v1, v2\nv_mul_u32_u24 v1, {row}, v1\nv_and_b32 v2, 3, v0\nv_lshl_add_u32 v1, v2, 3, v1\nv_add_u32 v{va}, {sbase}, v1")
    def poll(loads, regs, first=None, shadow=None):
        l = lab("poll"); d = lab("pd")
        A("s_mov_b32 s67, 0x40000")
        if first is not None:
            f = lab("pf"); fd = lab("pfd"); A(f"{f}:"); first[0](); A("s_waitcnt vmcnt(0)")
            A(f"v_cmp_eq_u32 vcc, -1, v{first[1]}\ns_sub_u32 s67, s67, 1\ns_cbranch_scc1 {fd}\ns_cbranch_vccnz {f}\n{fd}:")
        if shadow is not None:
            e = lab("pe"); loads(); shadow(); A(f"s_branch {e}")
        A(f"{l}:"); loads()
        if shadow is not None: A(f"{e}:")
        A("s_waitcnt vmcnt(0)")
        A(f"v_max3_u32 v1, v{regs[0]}, v{regs[1]}, v{regs[2]}")
        r = regs[3:]
        while r:
            if len(r) >= 2: A(f"v_max3_u32 v1, v1, v{r[0]}, v{r[1]}"); r = r[2:]
            else: A(f"v_max_u32 v1, v1, v{r[0]}"); r = r[1:]
        A(f"v_cmp_eq_u32 vcc, -1, v1\ns_sub_u32 s67, s67, 1\ns_cbranch_scc1 {d}\ns_cbranch_vccnz {l}\n{d}:")

    A(HDR.rstrip())
    A(f"; @launch grid=(256,1,1) block=(512,1,1) lds={LDS}")
    A('.amdgcn_target "amdgcn-amd-amdhsa--gfx950"\n.text')
    A(f".globl {NAME}_kernel\n.p2align 8\n.type {NAME}_kernel,@function\n{NAME}_kernel:")
    A("s_cmp_ge_u32 s2, 256\ns_cbranch_scc1 L_exit")
    stamp(0)
    A("s_load_dwordx16 s[32:47], s[0:1], 0\ns_load_dwordx8 s[48:55], s[0:1], 64\ns_load_dwordx2 s[56:57], s[0:1], 96")
    A("v_lshrrev_b32 v1, 6, v0\nv_and_b32 v0, 63, v0\ns_and_b32 s61, s2, 7\nv_readfirstlane_b32 s60, v1")
    A("s_lshr_b32 s78, s2, 3\ns_and_b32 s63, s78, 15\ns_lshr_b32 s64, s78, 4\ns_mov_b32 s65, s61")
    A("s_lshl_b32 s59, s61, 1\ns_add_u32 s59, s59, s64\ns_mov_b32 s66, s63")
    A("s_lshl_b32 s62, s61, 2\ns_add_u32 s62, s62, s78\ns_and_b32 s62, s62, 31")
    A("s_mov_b32 s70, s62\ns_mul_i32 s71, s61, 18\ns_add_u32 s71, s71, s62\ns_sub_u32 s71, s71, 14")
    A("v_lshrrev_b32 v56, 4, v0\nv_lshlrev_b32 v56, 4, v56\nv_and_b32 v57, 1, v0")
    if stamps:
        for i in range(1, 8): A(f"s_mov_b32 s{80+2*i}, 0")
    A("s_waitcnt lgkmcnt(0)")
    srd(12, 56, 0x1000000)
    A("s_cmp_ge_u32 s60, 4\ns_cbranch_scc1 L_stream")
    srd(20, 32, 2304); srd(16, 38, 576 * 8192)
    A("v_lshrrev_b32 v1, 5, v0\nv_mul_u32_u24 v1, 1152, v1\nv_and_b32 v2, 31, v0\nv_lshl_add_u32 v50, v2, 2, v1")
    for i in range(9): A(f"buffer_load_dword v{40+i}, v50, s[20:23], 0 offen offset:{i*128}")
    A("v_mov_b32 v1, 0\nbuffer_load_dword v201, v1, s[12:15], 0 offen sc1")
    A("v_lshrrev_b32 v1, 1, v0\nv_lshlrev_b32 v2, 4, v57\nv_lshl_add_u32 v53, v1, 13, v2")
    A(f"s_mul_i32 s69, s60, 5120\ns_add_u32 s69, s69, {STG}")
    A("s_lshl_b32 s72, s59, 9\ns_lshl_b32 s3, s66, 5\ns_add_u32 s72, s72, s3\ns_lshl_b32 s3, s60, 18\ns_add_u32 s72, s72, s3")
    dma(4, 53, lambda i: f"s_add_u32 s68, s72, {i << 20}", qnt)
    A("s_cmp_ge_u32 s60, 2\ns_cbranch_scc1 L_h1")
    A(f"s_add_u32 m0, s69, 4096\ns_add_u32 s68, s72, {4 << 20}\nbuffer_load_dwordx4 v53, s[16:19], s68 offen{qnt} lds\nL_h1:")
    A(f"v_mov_b32 v1, 0\nds_write_b32 v1, v1 offset:{CNT}\nds_write_b32 v1, v1 offset:{CNT+4}\nds_write_b32 v1, v1 offset:{CNT+8}\nv_lshlrev_b32 v2, 2, v0\nds_write_b32 v2, v1 offset:{TBL}\nds_write_b32 v2, v1 offset:{TBL+256}\ns_waitcnt lgkmcnt(0)\ns_barrier")
    A(f"s_mul_i32 s73, s60, 2560\nv_add_u32 v51, s73, v50")
    A("v_bfe_u32 v1, v0, 2, 2\nv_lshlrev_b32 v1, 5, v1\nv_lshl_add_u32 v1, v56, 4, v1\nv_and_b32 v2, 3, v0\nv_lshl_add_u32 v1, v2, 3, v1\nv_add_u32 v52, s69, v1")
    A("v_mul_u32_u24 v1, 1152, v57\nv_add3_u32 v58, v1, v56, s73")
    A("s_waitcnt vmcnt(4)")
    if hs: stamp(5)
    layernorm()
    A("s_mov_b32 s3, 0x9e3779b1\nv_mul_lo_u32 v201, v201, s3\nv_add_u32 v201, 0x7f4a7c15, v201")
    A("s_lshl_b32 s3, s60, 6\nv_add_u32 v1, s3, v58\ns_waitcnt vmcnt(0) lgkmcnt(0)")
    if hs: stamp(6)
    trread(4, 64)
    for i in range(4): A(f"ds_read_b128 v[{8+4*i}:{11+4*i}], v1 offset:{i*256}")
    A("v_mov_b32 v28, 0\nv_mov_b32 v29, 0\nv_mov_b32 v30, 0\nv_mov_b32 v31, 0")
    A("s_cmp_ge_u32 s60, 2\ns_cbranch_scc1 L_h2")
    A("ds_read_b64_tr_b16 v[80:81], v52 offset:4096\nds_read_b64_tr_b16 v[82:83], v52 offset:4224\nds_read_b128 v[24:27], v1 offset:1024")
    A("s_waitcnt lgkmcnt(0)\nv_mfma_f32_16x16x32_bf16 v[28:31], v[80:83], v[24:27], v[28:31]\nL_h2:\ns_waitcnt lgkmcnt(0)")
    for i in range(4): A(f"v_mfma_f32_16x16x32_bf16 v[28:31], v[{64+4*i}:{67+4*i}], v[{8+4*i}:{11+4*i}], v[28:31]")
    A(f"s_lshl_b32 s3, s60, 7\ns_add_u32 s3, s3, {QP}\nv_lshl_add_u32 v1, v57, 6, v56\nv_add_u32 v1, s3, v1\ns_nop 4")
    A(f"ds_write_b128 v1, v[28:31]\nv_mov_b32 v4, 0\nv_mov_b32 v2, 1\ns_waitcnt lgkmcnt(0)\nds_add_u32 v4, v2 offset:{CNT}")
    A("s_cmp_lg_u32 s60, 0\ns_cbranch_scc1 L_h3\ns_mov_b32 s67, 0x400000")
    A(f"L_qs:\nds_read_b32 v2, v4 offset:{CNT}\ns_waitcnt lgkmcnt(0)\nv_cmp_gt_u32 vcc, 0x100, v2\ns_sub_u32 s67, s67, 1\ns_cbranch_scc1 L_qsd\ns_cbranch_vccnz L_qs\nL_qsd:")
    A(f"v_and_b32 v2, 15, v0\nv_lshlrev_b32 v1, 3, v2")
    for i in range(4): A(f"ds_read_b64 v[{8+2*i}:{9+2*i}], v1 offset:{QP+i*128}")
    A(f"v_lshrrev_b32 v3, 3, v2\nv_lshlrev_b32 v3, 14, v3\nv_and_b32 v2, 7, v2\nv_lshl_add_u32 v3, v2, 3, v3")
    A(f"s_lshl_b32 s74, s59, 10\ns_add_u32 s74, s74, {WS_Q}\ns_lshl_b32 s3, s66, 6\ns_add_u32 s3, s3, s74\ns_waitcnt lgkmcnt(0)")
    A("v_add_f32 v8, v8, v10\nv_add_f32 v9, v9, v11\nv_add_f32 v12, v12, v14\nv_add_f32 v13, v13, v15\nv_add_f32 v8, v8, v12\nv_add_f32 v9, v9, v13")
    A("v_cvt_pk_bf16_f32 v8, v8, v9\nv_mov_b32 v9, v201\ns_mov_b64 exec, 0xffff")
    A("buffer_store_dwordx2 v[8:9], v3, s[12:15], s3 offen sc1\ns_mov_b64 exec, -1")
    if hs: stamp(7)
    A(f"s_lshl_b32 s74, s78, 10\ns_add_u32 s74, s74, {WS_Q}\nv_lshlrev_b32 v3, 4, v0\ns_mov_b32 s67, 0x40000\nL_qpoll:")
    A("buffer_load_dwordx4 v[12:15], v3, s[12:15], s74 offen sc1\ns_waitcnt vmcnt(0)")
    A("v_cmp_ne_u32 vcc, v13, v201\nv_cmp_ne_u32 s[76:77], v15, v201\ns_or_b64 vcc, vcc, s[76:77]")
    A("s_sub_u32 s67, s67, 1\ns_cbranch_scc1 L_qd\ns_cbranch_vccnz L_qpoll\nL_qd:")
    if hs: stamp(4)
    A(f"v_mov_b32 v13, v14\nv_lshlrev_b32 v3, 3, v0\nds_write_b64 v3, v[12:13] offset:{QL}\ns_waitcnt lgkmcnt(0)\nL_h3:")
    A("s_barrier")
    stamp(2)
    A("s_cmp_lg_u32 s60, 3\ns_cbranch_scc1 L_h4")
    for i in range(4): A(f"v_mov_b32 v{8+i}, -1")
    A("s_lshl_b32 s3, s64, 5\ns_lshl_b32 s74, s63, 1\ns_add_u32 s3, s3, s74\ns_lshl_b32 s3, s3, 3\ns_add_u32 s3, s3, s65")
    A(f"s_lshl_b32 s74, s3, 9\ns_add_u32 s74, s74, {WS_A}\ns_lshl_b32 s75, s3, 3\ns_add_u32 s75, s75, {WS_ML}")
    A("v_lshrrev_b32 v1, 5, v0\nv_and_b32 v2, 31, v0\nv_lshlrev_b32 v3, 12, v1\nv_lshl_add_u32 v3, v2, 4, v3\nv_lshlrev_b32 v4, 6, v1")
    A("buffer_store_dwordx4 v[8:11], v3, s[12:15], s74 offen sc1\nbuffer_store_dwordx2 v[8:9], v4, s[12:15], s75 offen sc1")
    A(f"s_cmp_lg_u32 s61, 0\ns_cbranch_scc1 L_c0\ns_lshl_b32 s3, s78, 8\ns_add_u32 s3, s3, {WS_CNT}\nv_mov_b32 v5, 0\nbuffer_store_dword v5, v5, s[12:15], s3 offen sc1\nL_c0:")
    A(f"s_cmp_ge_u32 s62, {NA}\ns_cbranch_scc1 L_c1")
    A(f"s_mul_i32 s3, s61, 4608\ns_lshl_b32 s74, s70, 8\ns_add_u32 s3, s3, s74\ns_add_u32 s3, s3, {WS_H}")
    A("v_mul_u32_u24 v3, 2304, v1\nv_lshl_add_u32 v3, v2, 3, v3\nbuffer_store_dwordx2 v[8:9], v3, s[12:15], s3 offen sc1\nL_c1:")
    A("s_cmp_lt_u32 s62, 14\ns_cbranch_scc1 L_c2")
    A(f"s_mul_i32 s3, s71, 4608\ns_add_u32 s3, s3, {WS_P}\nv_lshlrev_b32 v3, 4, v0\nv_lshlrev_b32 v4, 3, v0\ns_add_u32 s74, s3, 4096")
    for i in range(4): A(f"buffer_store_dwordx4 v[8:11], v3, s[12:15], s3 offen offset:{i*1024} sc1")
    A("buffer_store_dwordx2 v[8:9], v4, s[12:15], s74 offen sc1\nL_c2:")
    A(f"s_lshl_b32 s3, s2, 2\ns_add_u32 s3, s3, {WS_CL}\ns_waitcnt vmcnt(0)\nv_mov_b32 v1, 0\ns_mov_b64 exec, 1\nbuffer_store_dword v201, v1, s[12:15], s3 offen sc1\ns_mov_b64 exec, -1\nL_h4:")
    if weights:
        A(f"s_cmp_ge_u32 s62, {NA}\ns_cbranch_scc1 L_w1")
        srd(16, 40, 4096 * 1152)
        A("v_lshrrev_b32 v1, 3, v0\nv_mul_u32_u24 v1, 1152, v1\nv_and_b32 v2, 7, v0\nv_lshl_add_u32 v54, v2, 4, v1")
        A(f"s_mul_i32 s72, s61, {512*1152}\ns_lshl_b32 s3, s70, 7\ns_add_u32 s72, s72, s3\ns_mul_i32 s3, s60, {128*1152}\ns_add_u32 s72, s72, s3")
        A(f"s_lshl_b32 s69, s60, 14\ns_add_u32 s69, s69, {STG}")
        dma(16, 54, lambda i: f"s_add_u32 s68, s72, {i*8*1152}", wnt)
        A(f"s_lshl_b32 s3, s60, 5\ns_add_u32 s3, s3, {STG}"); traddr(52, 128, "s3")
        A("L_w1:\ns_cmp_lt_u32 s62, 14\ns_cbranch_scc1 L_w2")
        srd(16, 44, 576 * 9216)
        A("v_lshrrev_b32 v1, 2, v0\nv_mul_u32_u24 v1, 9216, v1\nv_and_b32 v2, 3, v0\nv_lshl_add_u32 v54, v2, 4, v1\nv_lshlrev_b32 v55, 4, v0")
        A(f"s_mul_i32 s72, s60, {144*9216}\ns_lshl_b32 s3, s71, 6\ns_add_u32 s72, s72, s3\ns_mul_i32 s69, s60, 9216\ns_add_u32 s69, s69, {STG}")
        dma(9, 54, lambda i: f"s_add_u32 s68, s72, {i*16*9216}", wnt)
        srd(16, 48, 4608 * 1152)
        A(f"s_mul_i32 s72, s71, {32*1152}\ns_mul_i32 s3, s60, 9216\ns_add_u32 s72, s72, s3\ns_add_u32 s69, s69, 36864")
        dma(9, 55, lambda i: f"s_add_u32 s68, s72, {i*1024}", wnt)
        srd(24, 46, 9216)
        A("v_and_b32 v1, 31, v0\nv_lshlrev_b32 v1, 1, v1\ns_lshl_b32 s3, s71, 6\nbuffer_load_ushort v200, v1, s[24:27], s3 offen")
        srd(24, 50, 1152)
        A("s_cmp_ge_u32 s71, 72\ns_cselect_b32 s3, 72, 0\ns_sub_u32 s3, s71, s3\ns_lshl_b32 s3, s3, 4\nv_lshlrev_b32 v1, 3, v57\nbuffer_load_dwordx2 v[202:203], v1, s[24:27], s3 offen")
        A(f"s_lshr_b32 s3, s60, 1\ns_mul_i32 s3, s3, {288*64}\ns_and_b32 s74, s60, 1\ns_lshl_b32 s74, s74, 5\ns_add_u32 s3, s3, s74\ns_add_u32 s3, s3, {STG}"); traddr(52, 64, "s3")
        A(f"s_mul_i32 s3, s60, 288\ns_add_u32 s3, s3, {STG+36864}"); traddr(53, 1152, "s3")
        A(f"s_mul_i32 s3, s60, 288\nv_lshl_add_u32 v1, v0, 2, s3\nv_mov_b32 v2, 0x3f803f80\nds_write_b32 v1, v2 offset:{HB+2304}\nds_write_b32 v1, v2 offset:{HB+2304+32}")
        A("v_and_b32 v1, 15, v0\nv_min_u32 v59, 2, v1")
        A("L_w2:\ns_waitcnt vmcnt(0) lgkmcnt(0)\nv_lshlrev_b32 v200, 16, v200")
    A("s_cmp_lg_u32 s60, 3\ns_cbranch_scc1 L_w3")
    A(f"s_mov_b32 s67, 0x40000\nv_mov_b32 v1, 0\nL_trig:\ns_sleep 16\nds_read_b32 v2, v1 offset:{CNT+8}\ns_waitcnt lgkmcnt(0)")
    A("v_cmp_eq_u32 vcc, 0, v2\ns_sub_u32 s67, s67, 1\ns_cbranch_scc1 L_trd\ns_cbranch_vccnz L_trig\nL_trd:")
    A(f"s_mov_b32 s67, 0x40000\nv_lshlrev_b32 v3, 4, v0\ns_mov_b32 s3, {WS_CL}\nL_cpoll:\nbuffer_load_dwordx4 v[8:11], v3, s[12:15], s3 offen sc1\ns_waitcnt vmcnt(0)")
    for r in range(4): A(f"v_xor_b32 v{8+r}, v{8+r}, v201")
    A("v_or3_b32 v8, v8, v9, v10\nv_or_b32 v8, v8, v11\nv_cmp_ne_u32 vcc, 0, v8\ns_sub_u32 s67, s67, 1\ns_cbranch_scc1 L_cd\ns_cbranch_vccnz L_cpoll\nL_cd:")
    A(f"v_mov_b32 v2, 1\nds_write_b32 v1, v2 offset:{CNT+4}\ns_waitcnt lgkmcnt(0)\nL_w3:")
    stamp(3)
    A("s_barrier\ns_branch L_tail")
    A("L_stream:")
    A(f"s_lshl_b32 s3, s78, 23\ns_sub_u32 s72, s60, 4\ns_lshl_b32 s73, s72, 12\ns_mul_i32 s28, s65, {S*16384}\ns_add_u32 s28, s28, s73")
    A(f"s_add_u32 s79, s28, {S*16384}\ns_add_u32 s73, s73, {S*131072}")
    if rot: A(f"s_mul_i32 s29, s2, {rot}\ns_and_b32 s29, s29, 31\ns_lshl_b32 s29, s29, 14\ns_add_u32 s28, s28, s29")
    A("s_add_u32 s4, s34, s3\ns_addc_u32 s5, s35, 0\ns_mov_b32 s6, 0x800000\ns_mov_b32 s7, 0x20000")
    A("s_add_u32 s8, s36, s3\ns_addc_u32 s9, s37, 0\ns_mov_b32 s10, s6\ns_mov_b32 s11, 0x20000")
    srd(24, 56, 0)
    A(f"s_lshl_b32 s58, s78, 8\ns_add_u32 s58, s58, {WS_CNT}\ns_mov_b32 s76, {NS}\nv_cmp_eq_u32 vcc, 0, v0\nv_mov_b32 v1, 0x7f000000\nv_mov_b32 v4, 0\nv_cndmask_b32 v62, v1, v4, vcc")
    C = 1 if dyn else 0
    claim = lambda s: dyn and A(f"v_mov_b32 v{58+s}, 1\nbuffer_atomic_add v{58+s}, v62, s[24:27], s58 offen sc0 sc1")
    A("v_lshlrev_b32 v2, 4, v0\nv_and_b32 v4, 3, v0\nv_lshlrev_b32 v4, 10, v4\nv_bfe_u32 v5, v0, 2, 2\nv_lshlrev_b32 v5, 8, v5\nv_add3_u32 v3, v4, v5, v56")
    A("s_mov_b32 s31, 0\ns_mov_b32 s30, 0x3e0293ee")
    vK = lambda s: 64 + s * 32
    vV = lambda s: 64 + s * 32 + 16
    def loadK(s):
        for kk in range(4): A(f"buffer_load_dwordx4 v[{vK(s)+4*kk}:{vK(s)+4*kk+3}], v3, s[4:7], s28 offen offset:{kk*64} nt")
    def loadV(s):
        for r in range(4): A(f"buffer_load_dwordx4 v[{vV(s)+4*r}:{vV(s)+4*r+3}], v2, s[8:11], s28 offen offset:{r*1024} nt")
    A("s_barrier")
    for s in range(NS):
        claim(s)
        loadK(s)
        loadV(s); A("s_add_u32 s28, s28, 16384")
    A("s_mov_b32 s77, s28")
    A("v_cmp_eq_u32 vcc, 1, v57\nv_mov_b32 v9, 0xffff\nv_mov_b32 v10, 0xffff0000\nv_cndmask_b32 v9, v9, v10, vcc\nv_bfe_u32 v8, v0, 1, 2")
    for w in range(4): A(f"v_cmp_eq_u32 vcc, {w}, v8\ns_nop 1\nv_cndmask_b32 v{4+w}, 0, v9, vcc")
    A("v_mov_b32 v24, 0xff7fffff\nv_mov_b32 v25, 0")
    for i in range(28, 32): A(f"v_mov_b32 v{i}, 0")
    if hs: stamp(4)
    A("v_bfe_u32 v1, v0, 3, 1\nv_lshl_add_u32 v1, v1, 8, v56\ns_barrier")
    for kk in range(4): A(f"ds_read_b128 v[{8+4*kk}:{11+4*kk}], v1 offset:{QL+kk*64}")
    stamp(2)
    if prio: A(f"s_setprio {prio}")
    A("s_waitcnt lgkmcnt(0)\nL_loop:")
    nsteps = 64
    for s in range(NS):
        if s == TRIG % NS: A(f"s_cmp_eq_u32 s31, {TRIG}\ns_cbranch_scc1 L_tset\nL_tsetd:")
        if s == (S - 2 * NS) % NS: A(f"s_cmp_eq_u32 s31, {S-2*NS}\ns_cbranch_scc1 L_gate\nL_gated:")
        A(f"s_waitcnt vmcnt({4+(8+C)*(NS-1)})\nv_readfirstlane_b32 s29, v{58+s}")
        for kk in range(4):
            A(f"v_mfma_f32_16x16x32_bf16 v[32:35], v[{vK(s)+4*kk}:{vK(s)+4*kk+3}], v[{8+4*kk}:{11+4*kk}], {'0' if kk == 0 else 'v[32:35]'}")
        A(f"s_mov_b32 s28, s77\ns_cmp_lt_u32 s31, {S-NS}")
        if dyn:
            k = lab("dy"); A(f"s_cbranch_scc1 {k}s\ns_add_u32 s29, s29, 1\ns_cmp_eq_u32 s60, 4\ns_cselect_b32 s29, s29, 0\ns_and_b32 s3, s31, 127\ns_lshl_b32 s3, s3, 2")
            A(f"v_mov_b32 v26, s29\nv_mov_b32 v27, s3\ns_mov_b32 s67, 0x400000\ns_mov_b64 exec, 1\n{k}:\nds_max_rtn_u32 v1, v27, v26 offset:{TBL}\ns_waitcnt lgkmcnt(0)")
            A(f"v_max_u32 v1, v1, v26\ns_sub_u32 s67, s67, 1\nv_readfirstlane_b32 s29, v1\ns_cbranch_scc1 {k}d\ns_cmp_eq_u32 s29, 0\ns_cbranch_scc1 {k}\n{k}d:\ns_mov_b64 exec, -1")
            A(f"s_sub_u32 s29, s29, 1\ns_min_u32 s29, s29, 0x400\ns_lshl_b32 s29, s29, 14\ns_add_u32 s28, s29, s73\n{k}s:")
        A("s_add_u32 s77, s77, 16384")
        if rot: A(f"s_cmp_ge_u32 s77, s79\ns_cselect_b32 s3, {S*16384}, 0\ns_sub_u32 s77, s77, s3")
        if not dyn: A(f"s_cmp_lt_u32 s31, {S-NS}\ns_cselect_b32 s28, s28, 0x800000")
        A("s_add_u32 s31, s31, 1\ns_cmp_lt_u32 s28, 0x800000\ns_cselect_b32 s6, 0x800000, 0\ns_cselect_b32 s10, 0x800000, 0\ns_addc_u32 s76, s76, 0")
        claim(s); loadK(s)
        A("s_nop 4\nv_max3_f32 v26, v32, v33, v34\nv_max_f32 v26, v26, v35")
        swapred("v_max_f32", 26, 27, 32)
        A("v_mov_b32 v27, v26\ns_nop 1\nv_permlane16_swap_b32 v26, v27\nv_max3_f32 v26, v26, v27, v24")
        A("v_sub_f32 v27, v24, v26\nv_mul_f32 v27, s30, v27\nv_exp_f32 v27, v27\nv_mov_b32 v24, v26\nv_mul_f32 v26, s30, v26")
        for i in range(4): A(f"v_fma_f32 v{32+i}, v{32+i}, s30, -v26")
        for i in range(4): A(f"v_exp_f32 v{32+i}, v{32+i}")
        A("v_mul_f32 v25, v25, v27")
        for i in range(4): A(f"v_mul_f32 v{28+i}, v{28+i}, v27")
        for i in range(4): A(f"v_add_f32 v25, v25, v{32+i}")
        for i in range(4): A(f"v_cvt_pk_bf16_f32 v{32+i}, v{32+i}, v{32+i}")
        A(f"s_waitcnt vmcnt({4+C+(8+C)*(NS-1)})")
        for i in range(4):
            for w in range(4): A(f"v_and_b32 v{36+w}, v{32+i}, v{4+w}")
            A(f"s_nop 1\nv_mfma_f32_16x16x32_bf16 v[28:31], v[{vV(s)+4*i}:{vV(s)+4*i+3}], v[36:39], v[28:31]")
        loadV(s)
        A("s_cmp_ge_u32 s31, s76\ns_cbranch_scc1 L_done")
    A(f"s_branch L_loop\nL_gate:\ns_mov_b32 s67, 0x400000\nv_mov_b32 v1, 0\nL_g1:\nds_read_b32 v26, v1 offset:{CNT+4}\ns_waitcnt lgkmcnt(0)")
    A("v_cmp_eq_u32 vcc, 0, v26\ns_sub_u32 s67, s67, 1\ns_cbranch_scc1 L_g2\ns_cbranch_vccnz L_g1\nL_g2:\ns_cmp_eq_u32 s60, 4\ns_cselect_b32 s26, 0x1000000, 0\ns_branch L_gated")
    A(f"L_tset:\nv_mov_b32 v1, 0\nv_mov_b32 v26, 1\nds_write_b32 v1, v26 offset:{CNT+8}\ns_branch L_tsetd\nL_done:")
    if stamps and hs: A("s_mov_b32 s90, s31")
    stamp(3)
    swapred("v_add_f32", 25, 27, 32); swapred("v_add_f32", 25, 27, 16)
    A(f"v_mul_f32 v24, s30, v24\nv_bfe_u32 v1, v0, 3, 1\nv_and_b32 v2, 7, v0\nv_lshlrev_b32 v3, 9, v1\nv_lshl_add_u32 v3, v56, 3, v3\nv_lshl_add_u32 v3, v2, 2, v3")
    A(f"s_lshl_b32 s3, s72, 10\nv_add_u32 v3, s3, v3\ns_lshl_b32 s3, s72, 4\nv_lshl_add_u32 v1, v1, 3, s3")
    for r in range(4): A(f"ds_write_b32 v3, v{28+r} offset:{OA+r*32}")
    A(f"ds_write_b64 v1, v[24:25] offset:{MLW}\ns_waitcnt lgkmcnt(0)\ns_barrier")
    A("s_cmp_lg_u32 s60, 4\ns_cbranch_scc1 L_tail")
    A("v_lshlrev_b32 v3, 4, v0\nv_lshrrev_b32 v1, 5, v0\nv_lshlrev_b32 v4, 3, v1")
    for w in range(4): A(f"ds_read_b64 v[{24+2*w}:{25+2*w}], v4 offset:{MLW+w*16}")
    for w in range(4): A(f"ds_read_b128 v[{8+4*w}:{11+4*w}], v3 offset:{OA+w*1024}")
    A("s_lshl_b32 s3, s64, 5\ns_lshl_b32 s74, s63, 1\ns_add_u32 s3, s3, s74\ns_lshl_b32 s3, s3, 3\ns_add_u32 s3, s3, s65")
    A(f"s_lshl_b32 s74, s3, 9\ns_add_u32 s74, s74, {WS_A}\ns_lshl_b32 s75, s3, 3\ns_add_u32 s75, s75, {WS_ML}")
    A("v_and_b32 v2, 31, v0\nv_lshlrev_b32 v3, 12, v1\nv_lshl_add_u32 v3, v2, 4, v3\nv_lshlrev_b32 v4, 6, v1\ns_waitcnt lgkmcnt(4)")
    A("v_max3_f32 v32, v24, v26, v28\nv_max_f32 v32, v32, v30")
    for w in range(4): A(f"v_sub_f32 v{24+2*w}, v{24+2*w}, v32")
    for w in range(4): A(f"v_exp_f32 v{24+2*w}, v{24+2*w}")
    A("s_nop 0\nv_mul_f32 v33, v24, v25\nv_fmac_f32 v33, v26, v27\nv_fmac_f32 v33, v28, v29\nv_fmac_f32 v33, v30, v31\ns_waitcnt lgkmcnt(0)")
    for r in range(4): A(f"v_mul_f32 v{8+r}, v{8+r}, v24")
    for w in range(1, 4):
        for r in range(4): A(f"v_fmac_f32 v{8+r}, v{8+4*w+r}, v{24+2*w}")
    for r in (8, 9, 10, 11, 32, 33): A(f"v_min_u32 v{r}, -2, v{r}")
    A("buffer_store_dwordx4 v[8:11], v3, s[12:15], s74 offen sc1\ns_mov_b32 exec_lo, 1\ns_mov_b32 exec_hi, 1")
    A("buffer_store_dwordx2 v[32:33], v4, s[12:15], s75 offen sc1\ns_mov_b64 exec, -1")
    A(f"L_tail:\ns_cmp_ge_u32 s62, 14\ns_cbranch_scc1 L_mlp\ns_cmp_lt_u32 s62, {NA}\ns_cbranch_scc1 L_att"); fin(); A("L_att:")
    A("s_lshr_b32 s3, s60, 2\ns_lshl_b32 s3, s3, 5\ns_lshl_b32 s74, s61, 2\ns_add_u32 s3, s3, s74\ns_and_b32 s74, s60, 3\ns_add_u32 s3, s3, s74")
    A(f"s_lshl_b32 s74, s3, 12\ns_add_u32 s74, s74, {WS_A}\ns_lshl_b32 s75, s3, 6\ns_add_u32 s75, s75, {WS_ML}")
    A("v_lshlrev_b32 v3, 4, v0\nv_lshrrev_b32 v1, 5, v0\nv_xor_b32 v4, v0, v1\nv_and_b32 v4, 7, v4\nv_lshlrev_b32 v4, 3, v4")
    ldml = lambda: A("buffer_load_dwordx2 v[24:25], v4, s[12:15], s75 offen sc1")
    def ldA():
        ldml()
        for i in range(4): A(f"buffer_load_dwordx4 v[{8+4*i}:{11+4*i}], v3, s[12:15], s74 offen offset:{i*1024} sc1")
    def shA():
        k = lab("sh"); A(f"s_cmp_ge_u32 s60, 4\ns_cbranch_scc1 {k}"); trread(16, 64, 52, 4096, 128); A(f"{k}:")
    poll(ldA, list(range(8, 26)), (ldml, 25) if twolevel else None, shA)
    if not hs: stamp(4)
    A("v_mov_b32 v26, v24"); rowred("v_max_f32", 26, (4, 2, 1))
    A("v_sub_f32 v24, v24, v26\nv_exp_f32 v24, v24\ns_nop 0\nv_mul_f32 v25, v24, v25"); rowred("v_add_f32", 25, (4, 2, 1))
    A("v_rcp_f32 v25, v25\ns_nop 0\nv_mul_f32 v24, v24, v25\ns_nop 1")
    for r in range(4): A(f"v_mul_f32_dpp v{28+r}, v24, v{8+r} row_newbcast:0{DPP}")
    for i in range(1, 4):
        for r in range(4): A(f"v_fmac_f32_dpp v{28+r}, v24, v{8+4*i+r} row_newbcast:{2*i}{DPP}")
    for r in range(4): A(f"v_mov_b32 v{32+r}, v{28+r}")
    A("s_nop 0")
    for r in range(4): A(f"v_permlane32_swap_b32 v{28+r}, v{32+r}")
    for r in range(4): A(f"v_add_f32 v{28+r}, v{28+r}, v{32+r}")
    A(f"v_cvt_pk_bf16_f32 v28, v28, v29\nv_cvt_pk_bf16_f32 v29, v30, v31\ns_lshr_b32 s3, s60, 2\ns_mul_i32 s3, s3, 1040\ns_and_b32 s74, s60, 3\ns_lshl_b32 s74, s74, 8\ns_add_u32 s3, s3, s74")
    A(f"v_and_b32 v1, 31, v0\nv_lshl_add_u32 v1, v1, 3, s3\nds_write_b64 v1, v[28:29] offset:{OB}\ns_waitcnt lgkmcnt(0)\ns_barrier")
    A("s_cmp_ge_u32 s60, 4\ns_cbranch_scc1 L_a1")
    A("v_mul_u32_u24 v1, 1040, v57\nv_add_u32 v1, v1, v56")
    oreg = lambda i: 8 + 4 * i if i < 8 else 204 + 4 * (i - 8)
    for i in range(16): A(f"ds_read_b128 v[{oreg(i)}:{oreg(i)+3}], v1 offset:{OB+i*64}")
    A(f"s_mul_i32 s3, s61, 4608\ns_lshl_b32 s74, s70, 8\ns_add_u32 s3, s3, s74\ns_lshl_b32 s74, s60, 6\ns_add_u32 s3, s3, s74\ns_add_u32 s3, s3, {WS_H}")
    A("v_mul_u32_u24 v2, 2304, v57\nv_add_u32 v2, v2, v56")
    for i in range(16):
        A(f"s_waitcnt lgkmcnt({15-i})\nv_mfma_f32_16x16x32_bf16 v[40:43], v[{64+4*i}:{67+4*i}], v[{oreg(i)}:{oreg(i)+3}], {'0' if i == 0 else 'v[40:43]'}")
    A("s_nop 7")
    for r in range(4): A(f"v_min_u32 v{40+r}, -2, v{40+r}")
    A(M8 + "\nbuffer_store_dwordx4 v[40:43], v2, s[12:15], s3 offen sc1\ns_mov_b64 exec, -1\nL_a1:")
    if not hs: stamp(5)
    fin()
    A("L_mlp:"); srd(20, 32, 2304)
    A("s_lshr_b32 s3, s60, 2\ns_mul_i32 s3, s3, 576\ns_and_b32 s74, s60, 3\ns_mul_i32 s74, s74, 144\ns_add_u32 s3, s3, s74")
    A("v_min_u32 v1, 35, v0\nv_lshl_add_u32 v1, v1, 2, s3\nv_lshlrev_b32 v3, 2, v1\nv_lshlrev_b32 v4, 1, v1")
    A("buffer_load_dwordx2 v[44:45], v4, s[20:23], 0 offen")
    def ldB(rng=range(8)):
        for i in rng: A(f"s_mov_b32 s3, {WS_H+i*4608}\nbuffer_load_dwordx4 v[{8+4*i}:{11+4*i}], v3, s[12:15], s3 offen sc1")
    def shB():
        k = lab("sh"); A(f"s_cmp_ge_u32 s60, 4\ns_cbranch_scc1 {k}"); trread(9, 128, 52, 2048, 64); trread(9, 164, 53, 32, 1152); A(f"{k}:")
    poll(ldB, list(range(8, 40)), ((lambda: ldB([7])), 39) if twolevel else None, shB)
    if not hs: stamp(6)
    for a, b in ((0, 1), (2, 3), (4, 5), (6, 7), (0, 2), (4, 6), (0, 4)):
        for r in range(4): A(f"v_add_f32 v{8+4*a+r}, v{8+4*a+r}, v{8+4*b+r}")
    def addbf(dst, a, b):
        for k in range(2):
            A(f"v_lshlrev_b32 v12, 16, v{a+k}\nv_and_b32 v13, 0xffff0000, v{a+k}\nv_lshlrev_b32 v14, 16, v{b+k}\nv_and_b32 v15, 0xffff0000, v{b+k}")
            A(f"v_add_f32 v12, v12, v14\nv_add_f32 v13, v13, v15\nv_cvt_pk_bf16_f32 v{dst+k}, v12, v13")
    A("v_cvt_pk_bf16_f32 v8, v8, v9\nv_cvt_pk_bf16_f32 v9, v10, v11")
    addbf(8, 8, 44)
    A(f"ds_write_b64 v4, v[8:9] offset:{HB}\ns_waitcnt lgkmcnt(0)\ns_barrier")
    A("s_cmp_lt_u32 s60, 4\ns_cbranch_scc1 L_m1\ns_cmp_eq_u32 s60, 4\ns_cbranch_scc1 L_st"); fin()
    A("L_st:\nv_lshrrev_b32 v1, 5, v0\nv_mul_u32_u24 v2, 1152, v1\nv_and_b32 v3, 31, v0\nv_lshl_add_u32 v50, v3, 2, v2\nv_lshlrev_b32 v1, 3, v1")
    for i in range(9): A(f"ds_read_b32 v{40+i}, v50 offset:{HB+i*128}")
    A("s_waitcnt lgkmcnt(0)")
    layernorm(True)
    A(f"v_mov_b32 v29, v27\nds_write_b64 v1, v[28:29] offset:{STAT}\ns_waitcnt lgkmcnt(0)\ns_barrier"); fin()
    A("L_m1:\ns_lshr_b32 s3, s60, 1\ns_mul_i32 s74, s3, 576\nv_mul_u32_u24 v1, 1152, v59\nv_add3_u32 v1, v1, v56, s74")
    for i in range(9): A(f"ds_read_b128 v[{204+4*i}:{207+4*i}], v1 offset:{HB+i*64}")
    A(f"s_mul_i32 s3, s3, 384\ns_and_b32 s74, s60, 1\ns_lshl_b32 s74, s74, 6\ns_add_u32 s3, s3, s74\nv_lshl_add_u32 v2, v59, 7, v56\nv_add_u32 v2, s3, v2")
    for i in range(9):
        A(f"s_waitcnt lgkmcnt({8-i})\nv_mfma_f32_16x16x32_bf16 v[40:43], v[{128+4*i}:{131+4*i}], v[{204+4*i}:{207+4*i}], {'0' if i == 0 else 'v[40:43]'}")
    A(f"v_lshlrev_b32 v1, 2, v0\nv_and_b32 v3, 31, v0\nv_lshlrev_b32 v3, 2, v3\nv_lshrrev_b32 v4, 5, v0\nv_lshlrev_b32 v4, 3, v4\ns_nop 2")
    A(f"ds_write_b128 v2, v[40:43] offset:{W1P}\ns_waitcnt lgkmcnt(0)\ns_barrier")
    A(f"ds_read_b32 v8, v1 offset:{W1P}\nds_read_b32 v9, v1 offset:{W1P+384}\nds_read_b32 v10, v3 offset:{W1P+256}\nds_read_b32 v11, v3 offset:{W1P+640}\nds_read_b64 v[12:13], v4 offset:{STAT}")
    A(f"s_lshl_b32 s3, s60, 7\nv_lshl_add_u32 v2, v0, 1, s3\nv_lshl_add_u32 v3, v57, 6, v56\nv_add_u32 v3, s3, v3\ns_waitcnt lgkmcnt(0)")
    A("v_add_f32 v8, v8, v9\nv_add_f32 v10, v10, v11\nv_fma_f32 v8, -v12, v10, v8\nv_mul_f32 v8, v8, v13\nv_cvt_pk_bf16_f32 v8, v8, v8\nv_lshlrev_b32 v8, 16, v8\nv_add_f32 v8, v8, v200\nv_cvt_pk_bf16_f32 v8, v8, v8\nv_lshlrev_b32 v8, 16, v8")
    A("v_mul_f32 v9, v8, v8\nv_mov_b32 v10, 1.0\nv_fmac_f32 v10, 0x3d372713, v9\nv_mul_f32 v10, v10, v8\nv_mul_f32 v10, 0xc0135761, v10\nv_exp_f32 v10, v10\ns_nop 0")
    A("v_add_f32 v10, 1.0, v10\nv_rcp_f32 v10, v10\ns_nop 0\nv_mul_f32 v8, v8, v10\nv_cvt_pk_bf16_f32 v8, v8, v8")
    A(f"ds_write_b16 v2, v8 offset:{GL}\ns_waitcnt lgkmcnt(0)\nds_read_b128 v[44:47], v3 offset:{GL}")
    A(f"s_mul_i32 s3, s71, 4608\ns_mul_i32 s74, s60, 576\ns_add_u32 s3, s3, s74\ns_add_u32 s3, s3, {WS_P}\nv_mul_u32_u24 v2, 2304, v57\nv_add_u32 v2, v2, v56\ns_waitcnt lgkmcnt(0)")
    for i in range(9): A(f"v_mfma_f32_16x16x32_bf16 v[{8+4*i}:{11+4*i}], v[{164+4*i}:{167+4*i}], v[44:47], 0")
    A(M8)
    for i in range(9):
        if i >= 7: A("s_nop 3")
        for r in range(4): A(f"v_min_u32 v{8+4*i+r}, -2, v{8+4*i+r}")
        A(f"buffer_store_dwordx4 v[{8+4*i}:{11+4*i}], v2, s[12:15], s3 offen offset:{i*64} sc1")
    A("s_mov_b64 exec, -1")
    if not hs: stamp(7)
    A("s_cmp_eq_u32 s60, 0\ns_cbranch_scc1 L_m2"); fin()
    A("L_m2:\nv_lshrrev_b32 v1, 1, v0\nv_mul_u32_u24 v1, 4608, v1\nv_lshl_add_u32 v3, v57, 4, v1")
    A("v_cmp_gt_u32 vcc, 32, v0\nv_mov_b32 v5, 0x7f000000\ns_lshl_b32 s75, s71, 4\nv_cndmask_b32 v4, v5, v3, vcc")
    A(f"v_lshl_add_u32 v5, v57, 3, s75\nds_read_b64 v[46:47], v5 offset:{HB}\ns_lshl_b32 s74, s71, 5\ns_add_u32 s74, s74, {WS_P}")
    def ldC():
        for i in range(5): A(f"s_add_u32 s3, s74, {i*32*4608}\nbuffer_load_dwordx4 v[{48+4*i}:{51+4*i}], v{3 if i < 4 else 4}, s[12:15], s3 offen sc1")
    poll(ldC, list(range(48, 68)))
    for a, b in ((0, 1), (2, 3), (0, 2), (0, 4)):
        for r in range(4): A(f"v_add_f32 v{48+4*a+r}, v{48+4*a+r}, v{48+4*b+r}")
    for m in ("quad_perm:[2,3,0,1]", "row_ror:4", "row_ror:8"):
        for r in range(4): A(f"v_add_f32_dpp v{48+r}, v{48+r}, v{48+r} {m}{DPP}")
    for wch in (16, 32):
        for r in range(4): A(f"v_mov_b32 v{52+r}, v{48+r}")
        A("s_nop 0")
        for r in range(4): A(f"v_permlane{wch}_swap_b32 v{48+r}, v{52+r}")
        for r in range(4): A(f"v_add_f32 v{48+r}, v{48+r}, v{52+r}")
    A("v_cvt_pk_bf16_f32 v8, v48, v49\nv_cvt_pk_bf16_f32 v9, v50, v51\ns_waitcnt lgkmcnt(0)")
    addbf(8, 8, 202); addbf(8, 8, 46)
    srd(20, 52, 2304)
    A("s_mov_b64 exec, 3\nbuffer_store_dwordx2 v[8:9], v5, s[20:23], 0 offen")
    A("s_cmp_lg_u32 s71, 0\ns_cbranch_scc1 L_m3\ns_mov_b64 exec, 1\nv_mov_b32 v1, 0\nbuffer_store_dword v201, v1, s[12:15], 0 offen\nL_m3:")
    fin()
    A("L_exit:\ns_endpgm")
    A(f""".section .rodata,"a"
.p2align 6
.amdhsa_kernel {NAME}_kernel
  .amdhsa_next_free_vgpr 256
  .amdhsa_next_free_sgpr 102
  .amdhsa_accum_offset 256
  .amdhsa_group_segment_fixed_size 0
  .amdhsa_kernarg_size 104
  .amdhsa_user_sgpr_count 2
  .amdhsa_user_sgpr_kernarg_segment_ptr 1
  .amdhsa_system_sgpr_workgroup_id_x 1
.end_amdhsa_kernel""")
    return "\n".join(L) + "\n"

if __name__ == "__main__":
    for a in sys.argv[1:]:
        name, _, kw = a.partition(":")
        open(name, "w").write(gen(**eval(f"dict({kw})")))
```

```python
import sys
NAME = "sequential_preLN__gqa_block_cached__dense_activation_gelu__decode"
HDR = open("cdna_kernels/" + NAME + ".s.ref").read().split("; Override launch")[0]
WS_CNT, WS_CL = 0xA000, 0xD000
WS_Q, WS_ML, WS_A, WS_H, WS_P = 0x1000, 0x10000, 0x20000, 0x80000, 0x100000
XN, QP, QL, OA, MLW, OB, HB, W1P, GL, CNT, STAT, STG = 0, 10240, 10752, 11264, 15360, 15488, 17664, 21120, 21888, 22400, 22416, 23040
TBL = 22528
LDS = STG + 73728
NA = 9
DPP = " row_mask:0xf bank_mask:0xf"
M8 = "s_mov_b32 exec_lo, 0x00030003\ns_mov_b32 exec_hi, 0x00030003"

def gen(NS=3, stamps=False, twolevel=False, b0=True, prio=0, hs=False, weights=True, wnt=' nt', qnt=' nt', thr=0, S=64, rot=0, dyn=False, TRIG=21, dbg=False, early=0, dry=0, lds=0, wl=0, late=1, bal=2, latea=0, par=1, hb=0):
    L = []; A = L.append
    uid = [0]
    def lab(p):
        uid[0] += 1; return f"L_{p}{uid[0]}"
    def stamp(i):
        if stamps: A(f"s_memrealtime s[{80+2*i}:{81+2*i}]")
    def fin():
        if stamps:
            stamp(1); A("s_mov_b64 exec, -1\ns_waitcnt lgkmcnt(0)")
            for i in range(8): A(f"v_mov_b32 v{8+i}, s{80+2*i}")
            A("s_lshl_b32 s3, s2, 3\ns_add_u32 s3, s3, s60\ns_lshl_b32 s3, s3, 6\ns_add_u32 s3, s3, 0x800000\nv_mov_b32 v1, 0")
            if dbg:
                k = lab("dbg"); srd(16, 54, 256)
                A(f"s_cmp_lg_u32 s2, {dbg}\ns_cbranch_scc1 {k}\ns_and_b32 s3, s60, 3\ns_cbranch_scc1 {k}\ns_lshl_b32 s3, s60, 3\ns_mov_b64 exec, 1")
                A(f"buffer_store_dwordx4 v[8:11], v1, s[16:19], s3 offen\nbuffer_store_dwordx4 v[12:15], v1, s[16:19], s3 offen offset:16\n{k}:")
            else: A("buffer_store_dwordx4 v[8:11], v1, s[12:15], s3 offen\nbuffer_store_dwordx4 v[12:15], v1, s[12:15], s3 offen offset:16")
        A("s_endpgm")
    def srd(d, p, size):
        A(f"s_mov_b32 s{d}, s{p}\ns_mov_b32 s{d+1}, s{p+1}\ns_mov_b32 s{d+2}, {size}\ns_mov_b32 s{d+3}, 0x20000")
    def swapred(op, v, t, which):
        A(f"v_mov_b32 v{t}, v{v}\ns_nop 1\nv_permlane{which}_swap_b32 v{v}, v{t}\n{op} v{v}, v{v}, v{t}")
    def rowred(op, v, rors):
        for r in rors: A(f"s_nop 1\n{op}_dpp v{v}, v{v}, v{v} row_ror:{r}{DPP}")
    def layernorm(stats=False):
        for i in range(9): A(f"v_lshlrev_b32 v{8+2*i}, 16, v{40+i}\nv_and_b32 v{9+2*i}, 0xffff0000, v{40+i}")
        A("v_add_f32 v26, v8, v9")
        for i in range(2, 18): A(f"v_add_f32 v26, v26, v{8+i}")
        rowred("v_add_f32", 26, (8, 4, 2, 1)); swapred("v_add_f32", 26, 27, 16)
        A("v_mul_f32 v26, 0x3ae38e39, v26\nv_mov_b32 v28, v26")
        for i in range(18): A(f"v_sub_f32 v{8+i}, v{8+i}, v26")
        A("v_mul_f32 v26, v8, v8")
        for i in range(1, 18): A(f"v_fmac_f32 v26, v{8+i}, v{8+i}")
        rowred("v_add_f32", 26, (8, 4, 2, 1)); swapred("v_add_f32", 26, 27, 16)
        A("v_mov_b32 v27, 0x3727c5ac\nv_fmac_f32 v27, 0x3ae38e39, v26\nv_rsq_f32 v27, v27\ns_nop 0")
        if stats: return
        for i in range(18): A(f"v_mul_f32 v{8+i}, v{8+i}, v27")
        for i in range(9): A(f"v_cvt_pk_bf16_f32 v{40+i}, v{8+2*i}, v{9+2*i}\nds_write_b32 v51, v{40+i} offset:{i*128}")
    def dma(n, voff, soffs, pol):
        for i in range(n):
            A(f"s_add_u32 m0, s69, {i*1024}"); A(soffs(i))
            A(f"buffer_load_dwordx4 v{voff}, s[16:19], s68 offen{pol} lds")
    def trread(n, dst, va=52, step=1024, row=32):
        for i in range(n):
            A(f"ds_read_b64_tr_b16 v[{dst+4*i}:{dst+4*i+1}], v{va} offset:{i*step}\nds_read_b64_tr_b16 v[{dst+4*i+2}:{dst+4*i+3}], v{va} offset:{i*step+4*row}")
    def traddr(va, row, sbase):
        A(f"v_lshrrev_b32 v1, 1, v56\nv_bfe_u32 v2, v0, 2, 2\nv_add_u32 v1, v1, v2\nv_mul_u32_u24 v1, {row}, v1\nv_and_b32 v2, 3, v0\nv_lshl_add_u32 v1, v2, 3, v1\nv_add_u32 v{va}, {sbase}, v1")
    def poll(loads, regs, first=None, shadow=None):
        l = lab("poll"); d = lab("pd")
        A("s_mov_b32 s67, 0x40000")
        if first is not None:
            f = lab("pf"); fd = lab("pfd"); A(f"{f}:"); first[0](); A("s_waitcnt vmcnt(0)")
            A(f"v_cmp_eq_u32 vcc, -1, v{first[1]}\ns_sub_u32 s67, s67, 1\ns_cbranch_scc1 {fd}\ns_cbranch_vccnz {f}\n{fd}:")
        if shadow is not None:
            e = lab("pe"); loads(); shadow(); A(f"s_branch {e}")
        A(f"{l}:"); loads()
        if shadow is not None: A(f"{e}:")
        A("s_waitcnt vmcnt(0)")
        A(f"v_max3_u32 v1, v{regs[0]}, v{regs[1]}, v{regs[2]}")
        r = regs[3:]
        while r:
            if len(r) >= 2: A(f"v_max3_u32 v1, v1, v{r[0]}, v{r[1]}"); r = r[2:]
            else: A(f"v_max_u32 v1, v1, v{r[0]}"); r = r[1:]
        A(f"v_cmp_eq_u32 vcc, -1, v1\ns_sub_u32 s67, s67, 1\ns_cbranch_scc1 {d}\ns_cbranch_vccnz {l}\n{d}:")

    A(HDR.rstrip())
    A(f"; @launch grid=(256,1,1) block=(512,1,1) lds={lds or LDS + (20480 if early else 0)}")
    A('.amdgcn_target "amdgcn-amd-amdhsa--gfx950"\n.text')
    A(f".globl {NAME}_kernel\n.p2align 8\n.type {NAME}_kernel,@function\n{NAME}_kernel:")
    A("s_cmp_ge_u32 s2, 256\ns_cbranch_scc1 L_exit")
    stamp(0)
    A("s_load_dwordx16 s[32:47], s[0:1], 0\ns_load_dwordx8 s[48:55], s[0:1], 64\ns_load_dwordx2 s[56:57], s[0:1], 96")
    A("v_lshrrev_b32 v1, 6, v0\nv_and_b32 v0, 63, v0\ns_and_b32 s61, s2, 7\nv_readfirstlane_b32 s60, v1")
    A("s_lshr_b32 s78, s2, 3\ns_and_b32 s63, s78, 15\ns_lshr_b32 s64, s78, 4\ns_mov_b32 s65, s61")
    A("s_lshl_b32 s59, s61, 1\ns_add_u32 s59, s59, s64\ns_mov_b32 s66, s63")
    A("s_lshl_b32 s62, s61, 2\ns_add_u32 s62, s62, s78\ns_and_b32 s62, s62, 31")
    A("s_mov_b32 s70, s62\ns_mul_i32 s71, s61, 18\ns_add_u32 s71, s71, s62\ns_sub_u32 s71, s71, 14")
    A("v_lshrrev_b32 v56, 4, v0\nv_lshlrev_b32 v56, 4, v56\nv_and_b32 v57, 1, v0")
    if stamps:
        for i in range(1, 8): A(f"s_mov_b32 s{80+2*i}, 0")
    A("s_waitcnt lgkmcnt(0)")
    srd(12, 56, 0x1000000)
    if dry: A("s_mov_b64 s[98:99], -1")
    A("s_cmp_ge_u32 s60, 4\ns_cbranch_scc1 L_stream")
    srd(20, 32, 2304); srd(16, 38, 576 * 8192)
    A("v_lshrrev_b32 v1, 5, v0\nv_mul_u32_u24 v1, 1152, v1\nv_and_b32 v2, 31, v0\nv_lshl_add_u32 v50, v2, 2, v1")
    for i in range(9): A(f"buffer_load_dword v{40+i}, v50, s[20:23], 0 offen offset:{i*128}")
    A("v_mov_b32 v1, 0\nbuffer_load_dword v201, v1, s[12:15], 0 offen sc1")
    A("v_lshrrev_b32 v1, 1, v0\nv_lshlrev_b32 v2, 4, v57\nv_lshl_add_u32 v53, v1, 13, v2")
    A(f"s_mul_i32 s69, s60, 5120\ns_add_u32 s69, s69, {LDS if early else STG}")
    A("s_lshl_b32 s72, s59, 9\ns_lshl_b32 s3, s66, 5\ns_add_u32 s72, s72, s3\ns_lshl_b32 s3, s60, 18\ns_add_u32 s72, s72, s3")
    dma(4, 53, lambda i: f"s_add_u32 s68, s72, {i << 20}", qnt)
    A("s_cmp_ge_u32 s60, 2\ns_cbranch_scc1 L_h1")
    A(f"s_add_u32 m0, s69, 4096\ns_add_u32 s68, s72, {4 << 20}\nbuffer_load_dwordx4 v53, s[16:19], s68 offen{qnt} lds\nL_h1:")
    A(f"v_mov_b32 v1, 0\nds_write_b32 v1, v1 offset:{CNT}\nds_write_b32 v1, v1 offset:{CNT+4}\nds_write_b32 v1, v1 offset:{CNT+8}\nds_write_b32 v1, v1 offset:{CNT+12}" + (f"\nv_lshlrev_b32 v2, 2, v0\nds_write_b32 v2, v1 offset:{TBL}\nds_write_b32 v2, v1 offset:{TBL+256}" if dyn else "") + "\ns_waitcnt lgkmcnt(0)\ns_barrier")
    A(f"s_mul_i32 s73, s60, 2560\nv_add_u32 v51, s73, v50")
    A("v_bfe_u32 v1, v0, 2, 2\nv_lshlrev_b32 v1, 5, v1\nv_lshl_add_u32 v1, v56, 4, v1\nv_and_b32 v2, 3, v0\nv_lshl_add_u32 v1, v2, 3, v1\nv_add_u32 v52, s69, v1")
    A("v_mul_u32_u24 v1, 1152, v57\nv_add3_u32 v58, v1, v56, s73")
    A("s_waitcnt vmcnt(4)")
    if hs: stamp(5)
    layernorm()
    A("s_mov_b32 s3, 0x9e3779b1\nv_mul_lo_u32 v201, v201, s3\nv_add_u32 v201, 0x7f4a7c15, v201")
    A("s_lshl_b32 s3, s60, 6\nv_add_u32 v1, s3, v58\ns_waitcnt vmcnt(0) lgkmcnt(0)")
    if hs: stamp(6)
    trread(4, 64)
    for i in range(4): A(f"ds_read_b128 v[{8+4*i}:{11+4*i}], v1 offset:{i*256}")
    A("v_mov_b32 v28, 0\nv_mov_b32 v29, 0\nv_mov_b32 v30, 0\nv_mov_b32 v31, 0")
    A("s_cmp_ge_u32 s60, 2\ns_cbranch_scc1 L_h2")
    A("ds_read_b64_tr_b16 v[80:81], v52 offset:4096\nds_read_b64_tr_b16 v[82:83], v52 offset:4224\nds_read_b128 v[24:27], v1 offset:1024")
    A("s_waitcnt lgkmcnt(0)\nv_mfma_f32_16x16x32_bf16 v[28:31], v[80:83], v[24:27], v[28:31]\nL_h2:\ns_waitcnt lgkmcnt(0)")
    for i in range(4): A(f"v_mfma_f32_16x16x32_bf16 v[28:31], v[{64+4*i}:{67+4*i}], v[{8+4*i}:{11+4*i}], v[28:31]")
    A(f"s_lshl_b32 s3, s60, 7\ns_add_u32 s3, s3, {QP}\nv_lshl_add_u32 v1, v57, 6, v56\nv_add_u32 v1, s3, v1\ns_nop 4")
    A(f"ds_write_b128 v1, v[28:31]\nv_mov_b32 v4, 0\nv_mov_b32 v2, 1\ns_waitcnt lgkmcnt(0)\nds_add_u32 v4, v2 offset:{CNT}")
    A("s_cmp_lg_u32 s60, 0\ns_cbranch_scc1 L_h3\ns_mov_b32 s67, 0x400000")
    A(f"L_qs:\nds_read_b32 v2, v4 offset:{CNT}\ns_waitcnt lgkmcnt(0)\nv_cmp_gt_u32 vcc, 0x100, v2\ns_sub_u32 s67, s67, 1\ns_cbranch_scc1 L_qsd\ns_cbranch_vccnz L_qs\nL_qsd:")
    A(f"v_and_b32 v2, 15, v0\nv_lshlrev_b32 v1, 3, v2")
    for i in range(4): A(f"ds_read_b64 v[{8+2*i}:{9+2*i}], v1 offset:{QP+i*128}")
    A(f"v_lshrrev_b32 v3, 3, v2\nv_lshlrev_b32 v3, 14, v3\nv_and_b32 v2, 7, v2\nv_lshl_add_u32 v3, v2, 3, v3")
    A(f"s_lshl_b32 s74, s59, 10\ns_add_u32 s74, s74, {WS_Q}\ns_lshl_b32 s3, s66, 6\ns_add_u32 s3, s3, s74\ns_waitcnt lgkmcnt(0)")
    A("v_add_f32 v8, v8, v10\nv_add_f32 v9, v9, v11\nv_add_f32 v12, v12, v14\nv_add_f32 v13, v13, v15\nv_add_f32 v8, v8, v12\nv_add_f32 v9, v9, v13")
    A("v_cvt_pk_bf16_f32 v8, v8, v9\nv_mov_b32 v9, v201\ns_mov_b64 exec, 0xffff")
    A("buffer_store_dwordx2 v[8:9], v3, s[12:15], s3 offen sc1\ns_mov_b64 exec, -1")
    if hs: stamp(7)
    A(f"s_lshl_b32 s74, s78, 10\ns_add_u32 s74, s74, {WS_Q}\nv_lshlrev_b32 v3, 4, v0\ns_mov_b32 s67, 0x40000\nL_qpoll:")
    A("buffer_load_dwordx4 v[12:15], v3, s[12:15], s74 offen sc1")
    if early: A(f"ds_write_b32 v4, v201 offset:{CNT+12}")
    A("s_waitcnt vmcnt(0)")
    A("v_cmp_ne_u32 vcc, v13, v201\nv_cmp_ne_u32 s[76:77], v15, v201\ns_or_b64 vcc, vcc, s[76:77]")
    A("s_sub_u32 s67, s67, 1\ns_cbranch_scc1 L_qd\ns_cbranch_vccnz L_qpoll\nL_qd:")
    if hs: stamp(4)
    def clear():
        A("s_cmp_lg_u32 s60, 3\ns_cbranch_scc1 L_h4")
        for i in range(4): A(f"v_mov_b32 v{8+i}, -1")
        A("s_lshl_b32 s3, s64, 5\ns_lshl_b32 s74, s63, 1\ns_add_u32 s3, s3, s74\ns_lshl_b32 s3, s3, 3\ns_add_u32 s3, s3, s65")
        A(f"s_lshl_b32 s74, s3, 9\ns_add_u32 s74, s74, {WS_A}\ns_lshl_b32 s75, s3, 3\ns_add_u32 s75, s75, {WS_ML}")
        A("v_lshrrev_b32 v1, 5, v0\nv_and_b32 v2, 31, v0\nv_lshlrev_b32 v3, 12, v1\nv_lshl_add_u32 v3, v2, 4, v3\nv_lshlrev_b32 v4, 6, v1")
        A("buffer_store_dwordx4 v[8:11], v3, s[12:15], s74 offen sc1\nbuffer_store_dwordx2 v[8:9], v4, s[12:15], s75 offen sc1")
        if dyn: A(f"s_cmp_lg_u32 s61, 0\ns_cbranch_scc1 L_c0\ns_lshl_b32 s3, s78, 8\ns_add_u32 s3, s3, {WS_CNT}\nv_mov_b32 v5, 0\nbuffer_store_dword v5, v5, s[12:15], s3 offen sc1\nL_c0:")
        A(f"s_cmp_ge_u32 s62, {NA}\ns_cbranch_scc1 L_c1")
        A(f"s_mul_i32 s3, s61, {4608>>hb}\ns_lshl_b32 s74, s70, {8-hb}\ns_add_u32 s3, s3, s74\ns_add_u32 s3, s3, {WS_H}")
        A(f"v_mul_u32_u24 v3, {2304>>hb}, v1\nv_lshl_add_u32 v3, v2, {3-hb}, v3\nbuffer_store_{'dword v8' if hb else 'dwordx2 v[8:9]'}, v3, s[12:15], s3 offen sc1\nL_c1:")
        A("s_cmp_lt_u32 s62, 14\ns_cbranch_scc1 L_c2")
        A(f"s_mul_i32 s3, s71, 4608\ns_add_u32 s3, s3, {WS_P}\nv_lshlrev_b32 v3, 4, v0\nv_lshlrev_b32 v4, 3, v0\ns_add_u32 s74, s3, 4096")
        for i in range(4): A(f"buffer_store_dwordx4 v[8:11], v3, s[12:15], s3 offen offset:{i*1024} sc1")
        A("buffer_store_dwordx2 v[8:9], v4, s[12:15], s74 offen sc1\nL_c2:")
        A(f"s_lshl_b32 s3, s2, 2\ns_add_u32 s3, s3, {WS_CL}\ns_waitcnt vmcnt(0)\nv_mov_b32 v1, 0\ns_mov_b64 exec, 1\nbuffer_store_dword v201, v1, s[12:15], s3 offen sc1\ns_mov_b64 exec, -1\nL_h4:")
    def stage_m():
        srd(16, 44, 576 * 9216)
        A("v_lshrrev_b32 v1, 2, v0\nv_mul_u32_u24 v1, 9216, v1\nv_and_b32 v2, 3, v0\nv_lshl_add_u32 v54, v2, 4, v1\nv_lshlrev_b32 v55, 4, v0")
        A(f"s_mul_i32 s72, s60, {144*9216}\ns_lshl_b32 s3, s71, 6\ns_add_u32 s72, s72, s3\ns_mul_i32 s69, s60, 9216\ns_add_u32 s69, s69, {STG}")
        dma(9, 54, lambda i: f"s_add_u32 s68, s72, {i*16*9216}", wnt)
        srd(16, 48, 4608 * 1152)
        A(f"s_mul_i32 s72, s71, {32*1152}\ns_mul_i32 s3, s60, 9216\ns_add_u32 s72, s72, s3\ns_add_u32 s69, s69, 36864")
        dma(9, 55, lambda i: f"s_add_u32 s68, s72, {i*1024}", wnt)
    def stage_a():
        srd(16, 40, 4096 * 1152)
        A("v_lshrrev_b32 v1, 3, v0\nv_mul_u32_u24 v1, 1152, v1\nv_and_b32 v2, 7, v0\nv_lshl_add_u32 v54, v2, 4, v1")
        A(f"s_mul_i32 s72, s61, {512*1152}\ns_lshl_b32 s3, s70, 7\ns_add_u32 s72, s72, s3\ns_mul_i32 s3, s60, {128*1152}\ns_add_u32 s72, s72, s3")
        A(f"s_lshl_b32 s69, s60, 14\ns_add_u32 s69, s69, {STG}")
        dma(16, 54, lambda i: f"s_add_u32 s68, s72, {i*8*1152}", wnt)
    def stage():
        if weights:
            A(f"s_cmp_ge_u32 s62, {NA}\ns_cbranch_scc1 L_w1")
            if not latea: stage_a()
            A(f"s_lshl_b32 s3, s60, 5\ns_add_u32 s3, s3, {STG}"); traddr(52, 128, "s3")
            A("L_w1:\ns_cmp_lt_u32 s62, 14\ns_cbranch_scc1 L_w2")
            if not late: stage_m()
            srd(24, 46, 9216)
            A("v_and_b32 v1, 31, v0\nv_lshlrev_b32 v1, 1, v1\ns_lshl_b32 s3, s71, 6\nbuffer_load_ushort v200, v1, s[24:27], s3 offen")
            srd(24, 50, 1152)
            A("s_cmp_ge_u32 s71, 72\ns_cselect_b32 s3, 72, 0\ns_sub_u32 s3, s71, s3\ns_lshl_b32 s3, s3, 4\nv_lshlrev_b32 v1, 3, v57\nbuffer_load_dwordx2 v[202:203], v1, s[24:27], s3 offen")
            A(f"s_lshr_b32 s3, s60, 1\ns_mul_i32 s3, s3, {288*64}\ns_and_b32 s74, s60, 1\ns_lshl_b32 s74, s74, 5\ns_add_u32 s3, s3, s74\ns_add_u32 s3, s3, {STG}"); traddr(52, 64, "s3")
            A(f"s_mul_i32 s3, s60, 288\ns_add_u32 s3, s3, {STG+36864}"); traddr(53, 1152, "s3")
            A(f"s_mul_i32 s3, s60, 288\nv_lshl_add_u32 v1, v0, 2, s3\nv_mov_b32 v2, 0x3f803f80\nds_write_b32 v1, v2 offset:{HB+2304}\nds_write_b32 v1, v2 offset:{HB+2304+32}")
            A("v_and_b32 v1, 15, v0\nv_min_u32 v59, 2, v1")
            A("L_w2:")
    A(f"v_mov_b32 v13, v14\nv_lshlrev_b32 v3, 3, v0\nds_write_b64 v3, v[12:13] offset:{QL}\ns_waitcnt lgkmcnt(0)")
    if early:
        A("s_barrier\ns_branch L_wts\nL_h3:\ns_mov_b32 s67, 0x400000")
        stamp(2)
        A(f"L_es:\nds_read_b32 v2, v4 offset:{CNT+12}\ns_waitcnt lgkmcnt(0)\nv_cmp_ne_u32 vcc, v2, v201\ns_sub_u32 s67, s67, 1\ns_cbranch_scc1 L_wts\ns_cbranch_vccnz L_es\nL_wts:")
        stage()
        A("s_cmp_eq_u32 s60, 0\ns_cbranch_scc1 L_eb\ns_barrier\nL_eb:")
        clear()
    else:
        if wl:
            A(f"s_branch L_h3b\nL_h3:\ns_cmp_lg_u32 s60, {wl}\ns_cbranch_scc1 L_h3b")
            srd(4, 34, 0); srd(8, 36, 0)
            A("v_mov_b32 v2, 0\nv_mov_b32 v3, 0\ns_mov_b32 s31, 0\ns_mov_b32 s76, 100\ns_mov_b32 s77, 0x800000\ns_mov_b64 exec, 0\ns_branch L_loop")
            A("L_wlret:\ns_mov_b64 exec, -1\nL_h3b:\ns_barrier")
        else: A("L_h3:\ns_barrier")
        stamp(2)
        clear(); stage()
    A("s_waitcnt vmcnt(0) lgkmcnt(0)\nv_lshlrev_b32 v200, 16, v200")
    if dry:
        A("v_mov_b32 v2, 0\nv_mov_b32 v3, 0\nv_mov_b32 v4, 0\nv_mov_b32 v5, 0\ns_mov_b32 s97, s60\ns_cmp_eq_u32 s60, 1\ns_cbranch_scc0 L_dry2\ns_mov_b32 s60, 0\ns_mov_b64 s[98:99], 0\ns_mov_b64 exec, 0\ns_branch L_tail")
        A("L_dry2:\ns_cmp_eq_u32 s60, 2\ns_cbranch_scc0 L_dryret\ns_mov_b32 s60, 4\ns_mov_b64 s[98:99], 0\ns_mov_b64 exec, 0\ns_branch L_done")
        A("L_dryret:\ns_mov_b32 s60, s97\ns_mov_b64 s[98:99], -1\ns_mov_b64 exec, -1\ns_waitcnt vmcnt(0) lgkmcnt(0)")
    A("s_cmp_lg_u32 s60, 3\ns_cbranch_scc1 L_w3")
    A(f"s_mov_b32 s67, 0x40000\nv_mov_b32 v1, 0\nL_trig:\ns_sleep 16\nds_read_b32 v2, v1 offset:{CNT+8}\ns_waitcnt lgkmcnt(0)")
    A("v_cmp_eq_u32 vcc, 0, v2\ns_sub_u32 s67, s67, 1\ns_cbranch_scc1 L_trd\ns_cbranch_vccnz L_trig\nL_trd:")
    A(f"s_mov_b32 s67, 0x40000\nv_lshlrev_b32 v3, 4, v0\ns_mov_b32 s3, {WS_CL}\nL_cpoll:\nbuffer_load_dwordx4 v[8:11], v3, s[12:15], s3 offen sc1\ns_waitcnt vmcnt(0)")
    for r in range(4): A(f"v_xor_b32 v{8+r}, v{8+r}, v201")
    A("v_or3_b32 v8, v8, v9, v10\nv_or_b32 v8, v8, v11\nv_cmp_ne_u32 vcc, 0, v8\ns_sub_u32 s67, s67, 1\ns_cbranch_scc1 L_cd\ns_cbranch_vccnz L_cpoll\nL_cd:")
    A(f"v_mov_b32 v2, 1\nds_write_b32 v1, v2 offset:{CNT+4}\ns_waitcnt lgkmcnt(0)\nL_w3:")
    if late >= 3:
        A(f"s_cmp_lt_u32 s62, 14\ns_cbranch_scc1 L_w4\ns_mov_b32 s67, 0x100000\nv_mov_b32 v1, 0\nL_f2:\ns_sleep 8\nds_read_b32 v2, v1 offset:{CNT+12}\ns_waitcnt lgkmcnt(0)")
        A("v_cmp_eq_u32 vcc, 0, v2\ns_sub_u32 s67, s67, 1\ns_cbranch_scc1 L_f2d\ns_cbranch_vccnz L_f2\nL_f2d:")
        stage_m(); A("L_w4:")
    stamp(3)
    A("s_barrier\ns_branch L_tail")
    A("L_stream:")
    A(f"s_lshl_b32 s3, s78, 23\ns_sub_u32 s72, s60, 4\ns_lshl_b32 s73, s72, 12\ns_mul_i32 s28, s65, {S*16384}\ns_add_u32 s28, s28, s73")
    A(f"s_add_u32 s79, s28, {S*16384}\ns_add_u32 s73, s73, {S*131072}")
    if bal:
        t0 = [62, 62, 62, 66, 65, 65, 65, 65]; t1 = [62, 62, 65, 65, 65, 65, 64, 64]
        if bal == 2: t0 = [63, 63, 63, 65, 65, 65, 64, 64]; t1 = [63, 63, 65, 65, 64, 64, 64, 64]
        pk = lambda t, f: sum(f(t, k) << (4 * k) for k in range(8))
        dn = lambda t, k: 66 - t[k]
        of = lambda t, k: 64 * k - sum(t[:k])
        A(f"s_mov_b32 s96, {pk(t0, dn)}\ns_mov_b32 s29, {pk(t0, of)}\ns_and_b32 s79, s62, 3\ns_cselect_b32 s96, {pk(t1, dn)}, s96\ns_cselect_b32 s29, {pk(t1, of)}, s29\ns_and_b32 s79, s62, 28")
        A("s_lshr_b32 s96, s96, s79\ns_lshr_b32 s29, s29, s79\ns_and_b32 s96, s96, 15\ns_and_b32 s29, s29, 15\ns_lshl_b32 s79, s79, 4\ns_sub_u32 s29, s79, s29")
        if par:
            A(f"s_and_b32 s79, s61, 1\ns_cselect_b32 s79, {par}, {-par}\ns_sub_u32 s96, 66, s96\ns_lshl_b32 s96, s96, 1\ns_add_u32 s96, s96, s79")
            A(f"s_lshr_b32 s28, s72, 1\ns_sub_u32 s96, s96, s28\ns_add_u32 s96, s96, 1\ns_lshr_b32 s96, s96, 1\ns_sub_u32 s96, s96, {NS}")
            A("s_and_b32 s28, s62, 4\ns_cselect_b32 s79, s79, 0\ns_lshl_b32 s29, s29, 1\ns_sub_u32 s29, s29, s79\ns_lshl_b32 s28, s29, 13\ns_lshl_b32 s29, s72, 12\ns_add_u32 s28, s28, s29")
        else:
            A(f"s_sub_u32 s96, {66-NS}, s96\ns_lshl_b32 s28, s29, 14\ns_lshl_b32 s29, s72, 12\ns_add_u32 s28, s28, s29")
    if rot: A(f"s_mul_i32 s29, s2, {rot}\ns_and_b32 s29, s29, 31\ns_lshl_b32 s29, s29, 14\ns_add_u32 s28, s28, s29")
    A("s_add_u32 s4, s34, s3\ns_addc_u32 s5, s35, 0\ns_mov_b32 s6, 0x800000\ns_mov_b32 s7, 0x20000")
    A("s_add_u32 s8, s36, s3\ns_addc_u32 s9, s37, 0\ns_mov_b32 s10, s6\ns_mov_b32 s11, 0x20000")
    if not dyn: A(f"s_mov_b32 s76, {NS}")
    if dyn: srd(24, 56, 0)
    if dyn: A(f"s_lshl_b32 s58, s78, 8\ns_add_u32 s58, s58, {WS_CNT}\ns_mov_b32 s76, {NS}\nv_cmp_eq_u32 vcc, 0, v0\nv_mov_b32 v1, 0x7f000000\nv_mov_b32 v4, 0\nv_cndmask_b32 v62, v1, v4, vcc")
    C = 1 if dyn else 0
    claim = lambda s: dyn and A(f"v_mov_b32 v{58+s}, 1\nbuffer_atomic_add v{58+s}, v62, s[24:27], s58 offen sc0 sc1")
    A("v_lshlrev_b32 v2, 4, v0\nv_and_b32 v4, 3, v0\nv_lshlrev_b32 v4, 10, v4\nv_bfe_u32 v5, v0, 2, 2\nv_lshlrev_b32 v5, 8, v5\nv_add3_u32 v3, v4, v5, v56")
    A("s_mov_b32 s31, 0\ns_mov_b32 s30, 0x3e0293ee")
    if late >= 3: A(f"s_add_u32 s97, s96, {late-3}")
    vK = lambda s: 64 + s * 32
    vV = lambda s: 64 + s * 32 + 16
    def loadK(s):
        for kk in range(4): A(f"buffer_load_dwordx4 v[{vK(s)+4*kk}:{vK(s)+4*kk+3}], v3, s[4:7], s28 offen offset:{kk*64} nt")
    def loadV(s):
        for r in range(4): A(f"buffer_load_dwordx4 v[{vV(s)+4*r}:{vV(s)+4*r+3}], v2, s[8:11], s28 offen offset:{r*1024} nt")
    A("s_barrier")
    for s in range(NS):
        claim(s)
        loadK(s)
        loadV(s); A("s_add_u32 s28, s28, 16384")
    A("s_mov_b32 s77, s28")
    A("v_cmp_eq_u32 vcc, 1, v57\nv_mov_b32 v9, 0xffff\nv_mov_b32 v10, 0xffff0000\nv_cndmask_b32 v9, v9, v10, vcc\nv_bfe_u32 v8, v0, 1, 2")
    for w in range(4): A(f"v_cmp_eq_u32 vcc, {w}, v8\ns_nop 1\nv_cndmask_b32 v{4+w}, 0, v9, vcc")
    A("v_mov_b32 v24, 0xff7fffff\nv_mov_b32 v25, 0")
    for i in range(28, 32): A(f"v_mov_b32 v{i}, 0")
    if hs: stamp(4)
    A("v_bfe_u32 v1, v0, 3, 1\nv_lshl_add_u32 v1, v1, 8, v56\ns_barrier")
    for kk in range(4): A(f"ds_read_b128 v[{8+4*kk}:{11+4*kk}], v1 offset:{QL+kk*64}")
    stamp(2)
    if prio: A(f"s_setprio {prio}")
    A("s_waitcnt lgkmcnt(0)\nL_loop:")
    G = 62 if bal else S
    for s in range(NS):
        if s == TRIG % NS: A(f"s_cmp_eq_u32 s31, {TRIG}\ns_cbranch_scc1 L_tset\nL_tsetd:")
        if s == (G - 2 * NS) % NS: A(f"s_cmp_eq_u32 s31, {G-2*NS}\ns_cbranch_scc1 L_gate\nL_gated:")
        A(f"s_waitcnt vmcnt({4+(8+C)*(NS-1)})" + (f"\nv_readfirstlane_b32 s29, v{58+s}" if dyn else ""))
        for kk in range(4):
            A(f"v_mfma_f32_16x16x32_bf16 v[32:35], v[{vK(s)+4*kk}:{vK(s)+4*kk+3}], v[{8+4*kk}:{11+4*kk}], {'0' if kk == 0 else 'v[32:35]'}")
        A(f"s_mov_b32 s28, s77" + (f"\ns_cmp_lt_u32 s31, {S-NS}" if dyn else ""))
        if dyn:
            k = lab("dy"); A(f"s_cbranch_scc1 {k}s\ns_add_u32 s29, s29, 1\ns_cmp_eq_u32 s60, 4\ns_cselect_b32 s29, s29, 0\ns_and_b32 s3, s31, 127\ns_lshl_b32 s3, s3, 2")
            A(f"v_mov_b32 v26, s29\nv_mov_b32 v27, s3\ns_mov_b32 s67, 0x400000\ns_mov_b64 exec, 1\n{k}:\nds_max_rtn_u32 v1, v27, v26 offset:{TBL}\ns_waitcnt lgkmcnt(0)")
            A(f"v_max_u32 v1, v1, v26\ns_sub_u32 s67, s67, 1\nv_readfirstlane_b32 s29, v1\ns_cbranch_scc1 {k}d\ns_cmp_eq_u32 s29, 0\ns_cbranch_scc1 {k}\n{k}d:\ns_mov_b64 exec, -1")
            A(f"s_sub_u32 s29, s29, 1\ns_min_u32 s29, s29, 0x400\ns_lshl_b32 s29, s29, 14\ns_add_u32 s28, s29, s73\n{k}s:")
        A("s_add_u32 s77, s77, 16384")
        if rot: A(f"s_cmp_ge_u32 s77, s79\ns_cselect_b32 s3, {S*16384}, 0\ns_sub_u32 s77, s77, s3")
        if not dyn: A(f"s_cmp_lt_u32 s31, {'s96' if bal else S-NS}\ns_cselect_b32 s28, s28, 0x800000")
        A("s_add_u32 s31, s31, 1\ns_cmp_lt_u32 s28, 0x800000\ns_cselect_b32 s6, 0x800000, 0\ns_cselect_b32 s10, 0x800000, 0\ns_addc_u32 s76, s76, 0")
        claim(s); loadK(s)
        A("s_nop 4\nv_max3_f32 v26, v32, v33, v34\nv_max_f32 v26, v26, v35")
        swapred("v_max_f32", 26, 27, 32)
        A("v_mov_b32 v27, v26\ns_nop 1\nv_permlane16_swap_b32 v26, v27\nv_max3_f32 v26, v26, v27, v24")
        A("v_sub_f32 v27, v24, v26\nv_mul_f32 v27, s30, v27\nv_exp_f32 v27, v27\nv_mov_b32 v24, v26\nv_mul_f32 v26, s30, v26")
        for i in range(4): A(f"v_fma_f32 v{32+i}, v{32+i}, s30, -v26")
        for i in range(4): A(f"v_exp_f32 v{32+i}, v{32+i}")
        A("v_mul_f32 v25, v25, v27")
        for i in range(4): A(f"v_mul_f32 v{28+i}, v{28+i}, v27")
        for i in range(4): A(f"v_add_f32 v25, v25, v{32+i}")
        for i in range(4): A(f"v_cvt_pk_bf16_f32 v{32+i}, v{32+i}, v{32+i}")
        A(f"s_waitcnt vmcnt({4+C+(8+C)*(NS-1)})")
        for i in range(4):
            for w in range(4): A(f"v_and_b32 v{36+w}, v{32+i}, v{4+w}")
            A(f"s_nop 1\nv_mfma_f32_16x16x32_bf16 v[28:31], v[{vV(s)+4*i}:{vV(s)+4*i+3}], v[36:39], v[28:31]")
        loadV(s)
        if late >= 3: A(f"s_cmp_eq_u32 s31, s97\ns_cbranch_scc1 L_fs{s}\nL_fsd{s}:")
        A("s_cmp_ge_u32 s31, s76\ns_cbranch_scc1 L_done")
    if wl: A("s_cbranch_execz L_wlret")
    A(f"s_branch L_loop\nL_gate:\ns_mov_b32 s67, 0x400000\nv_mov_b32 v1, 0\nL_g1:\nds_read_b32 v26, v1 offset:{CNT+4}\ns_waitcnt lgkmcnt(0)")
    A("v_cmp_eq_u32 vcc, 0, v26\ns_sub_u32 s67, s67, 1\ns_cbranch_scc1 L_g2\ns_cbranch_vccnz L_g1\nL_g2:" + ("\ns_cmp_eq_u32 s60, 4\ns_cselect_b32 s26, 0x1000000, 0" if dyn else "") + "\ns_branch L_gated")
    if late >= 3:
        for s in range(NS): A(f"L_fs{s}:\nv_mov_b32 v1, 0\nv_mov_b32 v26, 1\nds_write_b32 v1, v26 offset:{CNT+12}\ns_branch L_fsd{s}")
    A(f"L_tset:\nv_mov_b32 v1, 0\nv_mov_b32 v26, 1\nds_write_b32 v1, v26 offset:{CNT+8}\ns_branch L_tsetd\nL_done:")
    mark = [len(L)]
    if stamps and hs: A("s_mov_b32 s90, s31")
    stamp(3)
    swapred("v_add_f32", 25, 27, 32); swapred("v_add_f32", 25, 27, 16)
    A(f"v_mul_f32 v24, s30, v24\nv_bfe_u32 v1, v0, 3, 1\nv_and_b32 v2, 7, v0\nv_lshlrev_b32 v3, 9, v1\nv_lshl_add_u32 v3, v56, 3, v3\nv_lshl_add_u32 v3, v2, 2, v3")
    A(f"s_lshl_b32 s3, s72, 10\nv_add_u32 v3, s3, v3\ns_lshl_b32 s3, s72, 4\nv_lshl_add_u32 v1, v1, 3, s3")
    for r in range(4): A(f"ds_write_b32 v3, v{28+r} offset:{OA+r*32}")
    A(f"ds_write_b64 v1, v[24:25] offset:{MLW}\ns_waitcnt lgkmcnt(0)\ns_barrier")
    A("s_cmp_lg_u32 s60, 4\ns_cbranch_scc1 L_tail")
    A("v_lshlrev_b32 v3, 4, v0\nv_lshrrev_b32 v1, 5, v0\nv_lshlrev_b32 v4, 3, v1")
    for w in range(4): A(f"ds_read_b64 v[{24+2*w}:{25+2*w}], v4 offset:{MLW+w*16}")
    for w in range(4): A(f"ds_read_b128 v[{8+4*w}:{11+4*w}], v3 offset:{OA+w*1024}")
    A("s_lshl_b32 s3, s64, 5\ns_lshl_b32 s74, s63, 1\ns_add_u32 s3, s3, s74\ns_lshl_b32 s3, s3, 3\ns_add_u32 s3, s3, s65")
    A(f"s_lshl_b32 s74, s3, 9\ns_add_u32 s74, s74, {WS_A}\ns_lshl_b32 s75, s3, 3\ns_add_u32 s75, s75, {WS_ML}")
    A("v_and_b32 v2, 31, v0\nv_lshlrev_b32 v3, 12, v1\nv_lshl_add_u32 v3, v2, 4, v3\nv_lshlrev_b32 v4, 6, v1\ns_waitcnt lgkmcnt(4)")
    A("v_max3_f32 v32, v24, v26, v28\nv_max_f32 v32, v32, v30")
    for w in range(4): A(f"v_sub_f32 v{24+2*w}, v{24+2*w}, v32")
    for w in range(4): A(f"v_exp_f32 v{24+2*w}, v{24+2*w}")
    A("s_nop 0\nv_mul_f32 v33, v24, v25\nv_fmac_f32 v33, v26, v27\nv_fmac_f32 v33, v28, v29\nv_fmac_f32 v33, v30, v31\ns_waitcnt lgkmcnt(0)")
    for r in range(4): A(f"v_mul_f32 v{8+r}, v{8+r}, v24")
    for w in range(1, 4):
        for r in range(4): A(f"v_fmac_f32 v{8+r}, v{8+4*w+r}, v{24+2*w}")
    for r in (8, 9, 10, 11, 32, 33): A(f"v_min_u32 v{r}, -2, v{r}")
    A("buffer_store_dwordx4 v[8:11], v3, s[12:15], s74 offen sc1\ns_mov_b32 exec_lo, 1\ns_mov_b32 exec_hi, 1")
    A("buffer_store_dwordx2 v[32:33], v4, s[12:15], s75 offen sc1\ns_mov_b64 exec, -1")
    A(f"L_tail:\ns_cmp_ge_u32 s62, 14\ns_cbranch_scc1 L_mlp\ns_cmp_lt_u32 s62, {NA}\ns_cbranch_scc1 L_att"); fin(); A("L_att:")
    if latea:
        A("s_barrier\ns_cmp_ge_u32 s60, 4\ns_cbranch_scc1 L_lt0"); stage_a(); A("s_waitcnt vmcnt(0)\nL_lt0:\ns_barrier")
    A("s_lshr_b32 s3, s60, 2\ns_lshl_b32 s3, s3, 5\ns_lshl_b32 s74, s61, 2\ns_add_u32 s3, s3, s74\ns_and_b32 s74, s60, 3\ns_add_u32 s3, s3, s74")
    A(f"s_lshl_b32 s74, s3, 12\ns_add_u32 s74, s74, {WS_A}\ns_lshl_b32 s75, s3, 6\ns_add_u32 s75, s75, {WS_ML}")
    A("v_lshlrev_b32 v3, 4, v0\nv_lshrrev_b32 v1, 5, v0\nv_xor_b32 v4, v0, v1\nv_and_b32 v4, 7, v4\nv_lshlrev_b32 v4, 3, v4")
    ldml = lambda: A("buffer_load_dwordx2 v[24:25], v4, s[12:15], s75 offen sc1")
    def ldA():
        ldml()
        for i in range(4): A(f"buffer_load_dwordx4 v[{8+4*i}:{11+4*i}], v3, s[12:15], s74 offen offset:{i*1024} sc1")
    def shA():
        k = lab("sh"); A(f"s_cmp_ge_u32 s60, 4\ns_cbranch_scc1 {k}"); trread(16, 64, 52, 4096, 128); A(f"{k}:")
    poll(ldA, list(range(8, 26)), (ldml, 25) if twolevel else None, shA)
    if not hs: stamp(4)
    A("v_mov_b32 v26, v24"); rowred("v_max_f32", 26, (4, 2, 1))
    A("v_sub_f32 v24, v24, v26\nv_exp_f32 v24, v24\ns_nop 0\nv_mul_f32 v25, v24, v25"); rowred("v_add_f32", 25, (4, 2, 1))
    A("v_rcp_f32 v25, v25\ns_nop 0\nv_mul_f32 v24, v24, v25\ns_nop 1")
    for r in range(4): A(f"v_mul_f32_dpp v{28+r}, v24, v{8+r} row_newbcast:0{DPP}")
    for i in range(1, 4):
        for r in range(4): A(f"v_fmac_f32_dpp v{28+r}, v24, v{8+4*i+r} row_newbcast:{2*i}{DPP}")
    for r in range(4): A(f"v_mov_b32 v{32+r}, v{28+r}")
    A("s_nop 0")
    for r in range(4): A(f"v_permlane32_swap_b32 v{28+r}, v{32+r}")
    for r in range(4): A(f"v_add_f32 v{28+r}, v{28+r}, v{32+r}")
    A(f"v_cvt_pk_bf16_f32 v28, v28, v29\nv_cvt_pk_bf16_f32 v29, v30, v31\ns_lshr_b32 s3, s60, 2\ns_mul_i32 s3, s3, 1040\ns_and_b32 s74, s60, 3\ns_lshl_b32 s74, s74, 8\ns_add_u32 s3, s3, s74")
    A(f"v_and_b32 v1, 31, v0\nv_lshl_add_u32 v1, v1, 3, s3\nds_write_b64 v1, v[28:29] offset:{OB}\ns_waitcnt lgkmcnt(0)\ns_barrier")
    A("s_cmp_ge_u32 s60, 4\ns_cbranch_scc1 L_a1")
    A("v_mul_u32_u24 v1, 1040, v57\nv_add_u32 v1, v1, v56")
    oreg = lambda i: 8 + 4 * i if i < 8 else 204 + 4 * (i - 8)
    for i in range(16): A(f"ds_read_b128 v[{oreg(i)}:{oreg(i)+3}], v1 offset:{OB+i*64}")
    A(f"s_mul_i32 s3, s61, {4608>>hb}\ns_lshl_b32 s74, s70, {8-hb}\ns_add_u32 s3, s3, s74\ns_lshl_b32 s74, s60, {6-hb}\ns_add_u32 s3, s3, s74\ns_add_u32 s3, s3, {WS_H}")
    A(f"v_mul_u32_u24 v2, 2304, v57\nv_add_u32 v2, v2, v56\nv_lshrrev_b32 v2, {hb}, v2")
    for i in range(16):
        A(f"s_waitcnt lgkmcnt({15-i})\nv_mfma_f32_16x16x32_bf16 v[40:43], v[{64+4*i}:{67+4*i}], v[{oreg(i)}:{oreg(i)+3}], {'0' if i == 0 else 'v[40:43]'}")
    A("s_nop 7")
    if hb: A("v_cvt_pk_bf16_f32 v40, v40, v41\nv_cvt_pk_bf16_f32 v41, v42, v43")
    for r in range(4 >> hb): A(f"v_min_u32 v{40+r}, -2, v{40+r}")
    A(M8 + f"\nbuffer_store_{'dwordx2 v[40:41]' if hb else 'dwordx4 v[40:43]'}, v2, s[12:15], s3 offen sc1\ns_mov_b64 exec, -1\nL_a1:")
    if not hs: stamp(5)
    fin()
    A("L_mlp:"); srd(20, 32, 2304)
    if late:
        if late == 1: A("s_barrier")
        A("s_cmp_ge_u32 s60, 4\ns_cbranch_scc1 L_lt1")
        if late < 3: stage_m()
        A("s_waitcnt vmcnt(0)\nL_lt1:\ns_barrier")
    A("s_lshr_b32 s3, s60, 2\ns_mul_i32 s3, s3, 576\ns_and_b32 s74, s60, 3\ns_mul_i32 s74, s74, 144\ns_add_u32 s3, s3, s74")
    A("v_min_u32 v1, 35, v0\nv_lshl_add_u32 v1, v1, 2, s3\nv_lshlrev_b32 v3, 2, v1\nv_lshlrev_b32 v4, 1, v1")
    A("buffer_load_dwordx2 v[44:45], v4, s[20:23], 0 offen")
    def ldB(rng=range(8)):
        for i in rng:
            if hb: A(f"s_mov_b32 s3, {WS_H+i*2304}\nbuffer_load_dwordx2 v[{64+2*i}:{65+2*i}], v4, s[12:15], s3 offen sc1")
            else: A(f"s_mov_b32 s3, {WS_H+i*4608}\nbuffer_load_dwordx4 v[{8+4*i}:{11+4*i}], v3, s[12:15], s3 offen sc1")
    def shB():
        k = lab("sh"); A(f"s_cmp_ge_u32 s60, 4\ns_cbranch_scc1 {k}"); trread(9, 128, 52, 2048, 64); trread(9, 164, 53, 32, 1152); A(f"{k}:")
    poll(ldB, list(range(64, 80) if hb else range(8, 40)), ((lambda: ldB([7])), 79 if hb else 39) if twolevel else None, shB)
    if not hs: stamp(6)
    if hb:
        for i in range(16): A(f"v_lshlrev_b32 v{8+2*i}, 16, v{64+i}\nv_and_b32 v{9+2*i}, 0xffff0000, v{64+i}")
    for a, b in ((0, 1), (2, 3), (4, 5), (6, 7), (0, 2), (4, 6), (0, 4)):
        for r in range(4): A(f"v_add_f32 v{8+4*a+r}, v{8+4*a+r}, v{8+4*b+r}")
    def addbf(dst, a, b):
        for k in range(2):
            A(f"v_lshlrev_b32 v12, 16, v{a+k}\nv_and_b32 v13, 0xffff0000, v{a+k}\nv_lshlrev_b32 v14, 16, v{b+k}\nv_and_b32 v15, 0xffff0000, v{b+k}")
            A(f"v_add_f32 v12, v12, v14\nv_add_f32 v13, v13, v15\nv_cvt_pk_bf16_f32 v{dst+k}, v12, v13")
    A("v_cvt_pk_bf16_f32 v8, v8, v9\nv_cvt_pk_bf16_f32 v9, v10, v11")
    addbf(8, 8, 44)
    A(f"ds_write_b64 v4, v[8:9] offset:{HB}\ns_waitcnt lgkmcnt(0)\ns_barrier")
    A("s_cmp_lt_u32 s60, 4\ns_cbranch_scc1 L_m1\ns_cmp_eq_u32 s60, 4\ns_cbranch_scc1 L_st"); fin()
    A("L_st:\nv_lshrrev_b32 v1, 5, v0\nv_mul_u32_u24 v2, 1152, v1\nv_and_b32 v3, 31, v0\nv_lshl_add_u32 v50, v3, 2, v2\nv_lshlrev_b32 v1, 3, v1")
    for i in range(9): A(f"ds_read_b32 v{40+i}, v50 offset:{HB+i*128}")
    A("s_waitcnt lgkmcnt(0)")
    layernorm(True)
    A(f"v_mov_b32 v29, v27\nds_write_b64 v1, v[28:29] offset:{STAT}\ns_waitcnt lgkmcnt(0)\ns_barrier"); fin()
    A("L_m1:\ns_lshr_b32 s3, s60, 1\ns_mul_i32 s74, s3, 576\nv_mul_u32_u24 v1, 1152, v59\nv_add3_u32 v1, v1, v56, s74")
    for i in range(9): A(f"ds_read_b128 v[{204+4*i}:{207+4*i}], v1 offset:{HB+i*64}")
    A(f"s_mul_i32 s3, s3, 384\ns_and_b32 s74, s60, 1\ns_lshl_b32 s74, s74, 6\ns_add_u32 s3, s3, s74\nv_lshl_add_u32 v2, v59, 7, v56\nv_add_u32 v2, s3, v2")
    for i in range(9):
        A(f"s_waitcnt lgkmcnt({8-i})\nv_mfma_f32_16x16x32_bf16 v[40:43], v[{128+4*i}:{131+4*i}], v[{204+4*i}:{207+4*i}], {'0' if i == 0 else 'v[40:43]'}")
    A(f"v_lshlrev_b32 v1, 2, v0\nv_and_b32 v3, 31, v0\nv_lshlrev_b32 v3, 2, v3\nv_lshrrev_b32 v4, 5, v0\nv_lshlrev_b32 v4, 3, v4\ns_nop 2")
    A(f"ds_write_b128 v2, v[40:43] offset:{W1P}\ns_waitcnt lgkmcnt(0)\ns_barrier")
    A(f"ds_read_b32 v8, v1 offset:{W1P}\nds_read_b32 v9, v1 offset:{W1P+384}\nds_read_b32 v10, v3 offset:{W1P+256}\nds_read_b32 v11, v3 offset:{W1P+640}\nds_read_b64 v[12:13], v4 offset:{STAT}")
    A(f"s_lshl_b32 s3, s60, 7\nv_lshl_add_u32 v2, v0, 1, s3\nv_lshl_add_u32 v3, v57, 6, v56\nv_add_u32 v3, s3, v3\ns_waitcnt lgkmcnt(0)")
    A("v_add_f32 v8, v8, v9\nv_add_f32 v10, v10, v11\nv_fma_f32 v8, -v12, v10, v8\nv_mul_f32 v8, v8, v13\nv_cvt_pk_bf16_f32 v8, v8, v8\nv_lshlrev_b32 v8, 16, v8\nv_add_f32 v8, v8, v200\nv_cvt_pk_bf16_f32 v8, v8, v8\nv_lshlrev_b32 v8, 16, v8")
    A("v_mul_f32 v9, v8, v8\nv_mov_b32 v10, 1.0\nv_fmac_f32 v10, 0x3d372713, v9\nv_mul_f32 v10, v10, v8\nv_mul_f32 v10, 0xc0135761, v10\nv_exp_f32 v10, v10\ns_nop 0")
    A("v_add_f32 v10, 1.0, v10\nv_rcp_f32 v10, v10\ns_nop 0\nv_mul_f32 v8, v8, v10\nv_cvt_pk_bf16_f32 v8, v8, v8")
    A(f"ds_write_b16 v2, v8 offset:{GL}\ns_waitcnt lgkmcnt(0)\nds_read_b128 v[44:47], v3 offset:{GL}")
    A(f"s_mul_i32 s3, s71, 4608\ns_mul_i32 s74, s60, 576\ns_add_u32 s3, s3, s74\ns_add_u32 s3, s3, {WS_P}\nv_mul_u32_u24 v2, 2304, v57\nv_add_u32 v2, v2, v56\ns_waitcnt lgkmcnt(0)")
    for i in range(9): A(f"v_mfma_f32_16x16x32_bf16 v[{8+4*i}:{11+4*i}], v[{164+4*i}:{167+4*i}], v[44:47], 0")
    A(M8)
    for i in range(9):
        if i >= 7: A("s_nop 3")
        for r in range(4): A(f"v_min_u32 v{8+4*i+r}, -2, v{8+4*i+r}")
        A(f"buffer_store_dwordx4 v[{8+4*i}:{11+4*i}], v2, s[12:15], s3 offen offset:{i*64} sc1")
    A("s_mov_b64 exec, -1")
    if not hs: stamp(7)
    A("s_cmp_eq_u32 s60, 0\ns_cbranch_scc1 L_m2"); fin()
    A("L_m2:\nv_lshrrev_b32 v1, 1, v0\nv_mul_u32_u24 v1, 4608, v1\nv_lshl_add_u32 v3, v57, 4, v1")
    A("v_cmp_gt_u32 vcc, 32, v0\nv_mov_b32 v5, 0x7f000000\ns_lshl_b32 s75, s71, 4\nv_cndmask_b32 v4, v5, v3, vcc")
    A(f"v_lshl_add_u32 v5, v57, 3, s75\nds_read_b64 v[46:47], v5 offset:{HB}\ns_lshl_b32 s74, s71, 5\ns_add_u32 s74, s74, {WS_P}")
    def ldC():
        for i in range(5): A(f"s_add_u32 s3, s74, {i*32*4608}\nbuffer_load_dwordx4 v[{48+4*i}:{51+4*i}], v{3 if i < 4 else 4}, s[12:15], s3 offen sc1")
    poll(ldC, list(range(48, 68)))
    for a, b in ((0, 1), (2, 3), (0, 2), (0, 4)):
        for r in range(4): A(f"v_add_f32 v{48+4*a+r}, v{48+4*a+r}, v{48+4*b+r}")
    for m in ("quad_perm:[2,3,0,1]", "row_ror:4", "row_ror:8"):
        for r in range(4): A(f"v_add_f32_dpp v{48+r}, v{48+r}, v{48+r} {m}{DPP}")
    for wch in (16, 32):
        for r in range(4): A(f"v_mov_b32 v{52+r}, v{48+r}")
        A("s_nop 0")
        for r in range(4): A(f"v_permlane{wch}_swap_b32 v{48+r}, v{52+r}")
        for r in range(4): A(f"v_add_f32 v{48+r}, v{48+r}, v{52+r}")
    A("v_cvt_pk_bf16_f32 v8, v48, v49\nv_cvt_pk_bf16_f32 v9, v50, v51\ns_waitcnt lgkmcnt(0)")
    addbf(8, 8, 202); addbf(8, 8, 46)
    srd(20, 52, 2304)
    A("s_mov_b64 exec, 3\nbuffer_store_dwordx2 v[8:9], v5, s[20:23], 0 offen")
    A("s_cmp_lg_u32 s71, 0\ns_cbranch_scc1 L_m3\ns_mov_b64 exec, 1\nv_mov_b32 v1, 0\nbuffer_store_dword v201, v1, s[12:15], 0 offen\nL_m3:")
    fin()
    if dry:
        i0 = mark[0]; t = "\n".join(L[i0:]); del L[i0:]
        t = t.replace("s_mov_b64 exec, -1", "s_mov_b64 exec, s[98:99]")
        for v in ("3", "1"): t = t.replace(f"s_mov_b64 exec, {v}\n", f"s_and_b64 exec, s[98:99], {v}\n")
        for h in ("lo", "hi"):
            for v in ("0x00030003", "1"): t = t.replace(f"s_mov_b32 exec_{h}, {v}\n", f"s_and_b32 exec_{h}, s98, {v}\n")
        out = []
        for ln in t.split("\n"):
            if ln == "s_barrier": k = lab("nb"); out += [f"s_cbranch_execz {k}", ln, f"{k}:"]
            elif ln == "s_endpgm": out += ["s_cbranch_execz L_dryret", ln]
            else: out.append(ln)
        A("\n".join(out))
    A("L_exit:\ns_endpgm")
    A(f""".section .rodata,"a"
.p2align 6
.amdhsa_kernel {NAME}_kernel
  .amdhsa_next_free_vgpr 256
  .amdhsa_next_free_sgpr 102
  .amdhsa_accum_offset 256
  .amdhsa_group_segment_fixed_size 0
  .amdhsa_kernarg_size 104
  .amdhsa_user_sgpr_count 2
  .amdhsa_user_sgpr_kernarg_segment_ptr 1
  .amdhsa_system_sgpr_workgroup_id_x 1
.end_amdhsa_kernel""")
    return "\n".join(L) + "\n"

if __name__ == "__main__":
    for a in sys.argv[1:]:
        name, _, kw = a.partition(":")
        open(name, "w").write(gen(**eval(f"dict({kw})")))
```
